```python
import torch

def _softmax(x, axis=-1):
    return torch.softmax(x, dim=axis)

def _gelu(x):
    return torch.nn.functional.gelu(x, approximate='tanh')

def _silu(x):
    return torch.nn.functional.silu(x)

def _sigmoid(x):
    return torch.sigmoid(x)

def _layernorm(x, axis=-1, eps=1e-05):
    m = x.mean(dim=axis, keepdim=True)
    v = x.var(dim=axis, keepdim=True, unbiased=False)
    return (x - m) / torch.sqrt(v + eps)

def _scatter_add(tgt, idx, src, axis=0):
    return tgt.clone().index_add_(axis, idx, src)

def _segment_sum(src, seg, n):
    out = torch.zeros((n,) + src.shape[1:], dtype=src.dtype)
    return out.index_add_(0, seg, src)

def _pad(x, pw):
    flat = tuple((v for pair in reversed(pw) for v in pair))
    return torch.nn.functional.pad(x, flat)
kernel_name = 'adaLN_cond__compressed_kv_cla__geglu_ffn__prompt'

def setup_inputs():

    _w = lambda a: (lambda t: t.to(torch.bfloat16) if t.is_floating_point() else t)(torch.as_tensor(a))

    def _A_setup():
        B, H, Sq, Sk, D, M = (1, 32, 2048, 2048, 128, 512)
        Dc = 4 * D
        return {'x': _w((lambda *s: torch.randn(*s, dtype=torch.bfloat16) * 0.05)(B, Sq, M)), 'c_kv': _w((lambda *s: torch.randn(*s, dtype=torch.bfloat16) * 1.6)(B, Sk, Dc)), 'w_q': _w((lambda *s: torch.randn(*s, dtype=torch.bfloat16) * 0.8)(M, H, D) * M ** (-0.5)), 'w_uk': _w((lambda *s: torch.randn(*s, dtype=torch.bfloat16) * 0.8)(Dc, H, D) * Dc ** (-0.5)), 'w_uv': _w((lambda *s: torch.randn(*s, dtype=torch.bfloat16) * 1.6)(Dc, H, D) * Dc ** (-0.5)), 'w_o': _w((lambda *s: torch.randn(*s, dtype=torch.bfloat16) * 1.6)(H, D, M) * (H * D) ** (-0.5))}
    _A_in = _A_setup()

    def _B_setup():
        B, S, D, F = (1, 2048, 512, 1376)
        return {'x': _w((lambda *s: torch.randn(*s, dtype=torch.bfloat16) * 0.05)(B, S, D)), 'w_gate': _w((lambda *s: torch.randn(*s, dtype=torch.bfloat16) * 0.05)(D, F)), 'w_up': _w((lambda *s: torch.randn(*s, dtype=torch.bfloat16) * 0.05)(D, F)), 'w_down': _w((lambda *s: torch.randn(*s, dtype=torch.bfloat16) * 0.05)(F, D))}
    _B_in = _B_setup()
    return {'A_x': _A_in['x'], 'A_c_kv': _A_in['c_kv'], 'A_w_q': _A_in['w_q'], 'A_w_uk': _A_in['w_uk'], 'A_w_uv': _A_in['w_uv'], 'A_w_o': _A_in['w_o'], 'B_x': _B_in['x'], 'B_w_gate': _B_in['w_gate'], 'B_w_up': _B_in['w_up'], 'B_w_down': _B_in['w_down'], 'c': _w((lambda *s: torch.randn(*s, dtype=torch.bfloat16) * 0.1)(1, 512) * 8.0), 'w_mod': _w((lambda *s: torch.randn(*s, dtype=torch.bfloat16) * 0.1)(512, 6 * 512) * 512 ** (-0.5) * 8.0)}

def reference(A_x, A_c_kv, A_w_q, A_w_uk, A_w_uv, A_w_o, B_x, B_w_gate, B_w_up, B_w_down, c, w_mod):

    def _A_ref(x, c_kv, w_q, w_uk, w_uv, w_o):
        B, Sq, M = (x.shape[0], x.shape[1], x.shape[2])
        Sk = c_kv.shape[1]
        H, D = (w_q.shape[1], w_q.shape[2])
        q = torch.einsum('bqm,mhd->bhqd', x, w_q)
        k = torch.einsum('bkc,chd->bhkd', c_kv, w_uk)
        v = torch.einsum('bkc,chd->bhkd', c_kv, w_uv)
        scores = torch.einsum('bhqd,bhkd->bhqk', q, k) * D ** (-0.5)
        off = Sk - Sq
        qi = torch.arange(Sq)[:, None]
        kj = torch.arange(Sk)[None, :]
        cmask = kj <= qi + off
        scores = torch.where(cmask[None, None], scores, -1000000000.0)
        p = _softmax(scores, axis=-1)
        ctx = torch.einsum('bhqk,bhkd->bhqd', p, v)
        return torch.einsum('bhqd,hdm->bqm', ctx, w_o)

    def _B_ref(x, w_gate, w_up, w_down):
        return _gelu(x @ w_gate) * (x @ w_up) @ w_down
    x = A_x
    mod = (_silu(c) @ w_mod).reshape(c.shape[0], 6, 1, -1)
    sa, ca, ga, sb, cb, gb = (mod[:, 0].clone(), mod[:, 1].clone(), mod[:, 2].clone(), mod[:, 3].clone(), mod[:, 4].clone(), mod[:, 5].clone())
    h = _layernorm(x, axis=-1) * (1 + ca) + sa
    x = x + ga * _A_ref(h, A_c_kv, A_w_q, A_w_uk, A_w_uv, A_w_o)
    h = _layernorm(x, axis=-1) * (1 + cb) + sb
    x = x + gb * _B_ref(h, B_w_gate, B_w_up, B_w_down)
    return x
```

```python
import re
from collections import defaultdict

REG_RE = re.compile(r'^(-|abs\()?\s*([vas])(\d+|\[(\d+):(\d+)\])\)?$')

def regs_of(op):
    op = op.strip()
    if op.startswith('-'):
        op = op[1:]
    if op.startswith('abs(') and op.endswith(')'):
        op = op[4:-1]
    if op.startswith('|') and op.endswith('|'):
        op = op[1:-1]
    m = re.match(r'^([vas])(\d+)$', op)
    if m:
        return [m.group(1) + m.group(2)]
    m = re.match(r'^([vas])\[(\d+):(\d+)\]$', op)
    if m:
        return [m.group(1) + str(i) for i in range(int(m.group(2)), int(m.group(3)) + 1)]
    if op in ('vcc', 'vcc_lo', 'vcc_hi'):
        return ['vcc']
    if op in ('exec', 'exec_lo', 'exec_hi'):
        return ['exec']
    if op == 'm0':
        return ['m0']
    return []

TRANS = ('v_exp_f32', 'v_log_f32', 'v_rcp_f32', 'v_rsq_f32', 'v_sqrt_f32', 'v_sin_f32', 'v_cos_f32',
         'v_rcp_iflag_f32')

class Ins:
    __slots__ = ('text', 'mn', 'ops', 'mods', 'kind', 'rd', 'wr', 'label', 'target', 'tok_w', 'tok_r',
                 'tok_mv', 'srcc', 'srcab', 'passes', 'comment', 'pre', 'storedata', 'lane_sel', 'isdpp', 'carry_in')
    def __init__(self, text, tok_w=(), tok_r=(), tok_mv=None):
        self.text = text
        self.label = None
        self.target = None
        self.tok_w = list(tok_w)
        self.tok_r = list(tok_r)
        self.tok_mv = tok_mv
        self.rd = []
        self.wr = []
        self.srcc = []
        self.srcab = []
        self.storedata = []
        self.lane_sel = []
        self.passes = 0
        self.isdpp = False
        self.kind = 'other'
        self.mn = ''
        self.parse()

    def parse(self):
        t = self.text.split(';')[0].strip()
        if not t:
            self.kind = 'pseudo'
            return
        if t.endswith(':'):
            self.label = t[:-1]
            self.kind = 'label'
            return
        if t.startswith('.'):
            self.kind = 'directive'
            return
        parts = t.split(None, 1)
        mn = parts[0]
        rest = parts[1] if len(parts) > 1 else ''
        ops = []
        depth = 0
        cur = ''
        for ch in rest:
            if ch in '[(':
                depth += 1
            if ch in '])':
                depth -= 1
            if ch == ',' and depth == 0:
                ops.append(cur.strip())
                cur = ''
            else:
                cur += ch
        if cur.strip():
            ops.append(cur.strip())
        mods = ''
        if ops:
            last = ops[-1].split(None, 1)
            if len(last) > 1 and not mn.startswith('s_waitcnt'):
                ops[-1] = last[0]
                mods = last[1]
        self.mn = mn
        self.ops = ops
        self.mods = mods
        base = re.sub(r'_(e32|e64|dpp|sdwa)$', '', mn)
        R = regs_of
        if mn.startswith('v_mfma'):
            self.kind = 'mfma'
            self.wr = R(ops[0])
            self.srcab = R(ops[1]) + R(ops[2])
            self.srcc = R(ops[3])
            self.rd = self.srcab + self.srcc + ['exec']
            if '32x32x16' in mn: self.passes = 8
            elif '16x16x32' in mn: self.passes = 4
            else: raise ValueError('unknown mfma ' + mn)
        elif mn.startswith('v_'):
            self.kind = 'trans' if base in TRANS else 'valu'
            self.isdpp = mn.endswith('_dpp') or 'row_' in mods or 'quad_perm' in mods or 'wave_' in mods
            if base.startswith('v_cmpx'):
                raise ValueError('no v_cmpx')
            if base in ('v_add_co_u32', 'v_sub_co_u32', 'v_subrev_co_u32', 'v_addc_co_u32', 'v_subb_co_u32',
                        'v_div_scale_f32', 'v_mad_u64_u32'):
                self.wr = R(ops[0]) + R(ops[1])
                for o in ops[2:]: self.rd += R(o)
            elif base in ('v_permlane32_swap_b32', 'v_permlane16_swap_b32', 'v_swap_b32'):
                self.wr = R(ops[0]) + R(ops[1])
                self.rd = R(ops[0]) + R(ops[1])
            elif base == 'v_nop':
                pass
            else:
                self.wr = R(ops[0])
                for o in ops[1:]: self.rd += R(o)
                if base in ('v_fmac_f32', 'v_dot2c_f32_bf16', 'v_pk_fmac_f16', 'v_writelane_b32') or self.isdpp \
                        or 'UNUSED_PRESERVE' in mods:
                    self.rd += R(ops[0])
                if base in ('v_readlane_b32', 'v_writelane_b32'):
                    self.lane_sel = R(ops[2])
                if base == 'v_div_fmas_f32':
                    self.rd.append('vcc')
            self.rd.append('exec')
        elif mn.startswith('ds_'):
            self.kind = 'ds'
            if mn.startswith('ds_read') or mn.startswith('ds_bpermute') or mn.startswith('ds_permute') \
                    or mn.startswith('ds_swizzle') or '_rtn' in mn:
                self.wr = R(ops[0])
                for o in ops[1:]: self.rd += R(o)
            else:
                for o in ops: self.rd += R(o)
            self.rd.append('exec')
        elif mn.startswith('buffer_') or mn.startswith('global_'):
            self.kind = 'vmem'
            modl = mods.split()
            if mn in ('buffer_wbl2', 'buffer_inv'):
                pass
            elif mn.startswith('buffer_load') and 'lds' in modl:
                for o in ops: self.rd += R(o)
                self.rd.append('m0')
                self.kind = 'dma'
            elif mn.startswith('global_load_lds'):
                for o in ops: self.rd += R(o)
                self.rd.append('m0')
                self.kind = 'dma'
            elif mn.startswith('buffer_load') or mn.startswith('global_load'):
                self.wr = R(ops[0])
                for o in ops[1:]: self.rd += R(o)
            elif mn.startswith('buffer_store'):
                for o in ops: self.rd += R(o)
                if 'x4' in mn or 'x3' in mn: self.storedata = R(ops[0])
            elif mn.startswith('global_store'):
                for o in ops: self.rd += R(o)
                if 'x4' in mn or 'x3' in mn: self.storedata = R(ops[1])
            elif mn.startswith('global_atomic'):
                if 'sc0' in modl:
                    self.wr = R(ops[0])
                    for o in ops[1:]: self.rd += R(o)
                else:
                    for o in ops: self.rd += R(o)
            elif mn.startswith('buffer_atomic'):
                for o in ops: self.rd += R(o)
                if 'sc0' in modl: self.wr = R(ops[0])
            else:
                raise ValueError('unknown vmem ' + mn)
            self.rd.append('exec')
        elif mn.startswith('s_load') or mn.startswith('s_buffer_load') or mn in ('s_memtime', 's_memrealtime'):
            self.kind = 'smem'
            self.wr = R(ops[0])
            for o in ops[1:]: self.rd += R(o)
        elif mn.startswith('s_'):
            self.kind = 'salu'
            if mn == 's_branch':
                self.kind = 'branch'; self.target = ops[0]
            elif mn.startswith('s_cbranch'):
                self.kind = 'cbranch'; self.target = ops[0]
                if 'vcc' in mn: self.rd = ['vcc']
                if 'exec' in mn: self.rd = ['exec']
            elif mn == 's_endpgm':
                self.kind = 'end'
            elif mn == 's_waitcnt':
                self.kind = 'waitcnt'
            elif mn == 's_nop':
                self.kind = 'nop'
            elif mn in ('s_barrier', 's_setprio', 's_sleep', 's_sethalt'):
                pass
            elif mn.startswith('s_cmp') or mn.startswith('s_bitcmp'):
                for o in ops: self.rd += R(o)
            else:
                self.wr = R(ops[0])
                for o in ops[1:]: self.rd += R(o)
                if mn in ('s_addk_i32', 's_mulk_i32', 's_cmov_b32', 's_cmov_b64', 's_cmovk_i32'):
                    self.rd += R(ops[0])
                if 'saveexec' in mn:
                    self.wr.append('exec'); self.rd.append('exec')
        else:
            raise ValueError('unknown instr ' + self.text)

    def states(self):
        if self.kind in ('pseudo', 'label', 'directive'):
            return 0
        if self.kind == 'nop':
            return int(self.ops[0], 0) + 1
        return 1


def parse_wait(ins):
    t = ins.text.split(';')[0]
    vm = re.search(r'vmcnt\((\d+)\)', t)
    lg = re.search(r'lgkmcnt\((\d+)\)', t)
    return (int(vm.group(1)) if vm else None, int(lg.group(1)) if lg else None)


class Kernel:
    def __init__(self, name):
        self.name = name
        self.code = []
        self._lab = 0

    def __call__(self, text, **kw):
        for line in text.split('\n'):
            line = line.strip()
            if line:
                self.code.append(Ins(line, **kw))
        return self

    def label(self, name):
        self.code.append(Ins(name + ':'))

    def newlabel(self, stem='L'):
        self._lab += 1
        return '%s_%s_%d' % (stem, self.name, self._lab)

    def need(self, *toks):
        self.code.append(Ins('', tok_r=toks))

    def tokmv(self, dst, src):
        self.code.append(Ins('', tok_mv=(dst, src)))

    def comment(self, s):
        self.code.append(Ins('; ' + s))

    def _succ(self):
        code = self.code
        lab = {c.label: i for i, c in enumerate(code) if c.label}
        succ = []
        for i, c in enumerate(code):
            s = []
            if c.kind == 'branch':
                s = [lab[c.target]]
            elif c.kind == 'cbranch':
                s = [lab[c.target]]
                if i + 1 < len(code): s.append(i + 1)
            elif c.kind == 'end':
                s = []
            elif i + 1 < len(code):
                s = [i + 1]
            succ.append(s)
        return succ

    def insert_waits(self):
        code = self.code
        succ = self._succ()
        n = len(code)
        VMAX, LMAX = 63, 15
        need = {}

        def transfer(i, st):
            vm, lg, sm = dict(st[0]), dict(st[1]), set(st[2])
            c = code[i]
            touched = list(c.rd) + list(c.wr) + ['T:' + t for t in c.tok_r]
            vN = lN = None
            for r in touched:
                if r in vm:
                    if c.kind == 'vmem' and r in c.wr and r not in c.rd:
                        continue
                    vN = vm[r] if vN is None else min(vN, vm[r])
                if r in lg:
                    if c.kind == 'ds' and r in c.wr and r not in c.rd and not sm:
                        continue
                    lN = lg[r] if lN is None else min(lN, lg[r])
                if r in sm:
                    lN = 0
            if lN is not None and sm:
                lN = 0
            if vN is not None: vN = min(vN, VMAX)
            if lN is not None: lN = min(lN, LMAX)
            old = need.get(i, [None, None])
            nv = old[0] if vN is None else (vN if old[0] is None else min(old[0], vN))
            nl = old[1] if lN is None else (lN if old[1] is None else min(old[1], lN))
            if nv is not None or nl is not None:
                need[i] = [nv, nl]
            wv, wl = nv, nl
            if c.kind == 'waitcnt':
                a, b = parse_wait(c)
                if a is not None: wv = a if wv is None else min(wv, a)
                if b is not None: wl = b if wl is None else min(wl, b)
            if wv is not None:
                vm = {r: d for r, d in vm.items() if d < wv}
            if wl is not None:
                if wl == 0:
                    lg = {}; sm = set()
                elif not sm:
                    lg = {r: d for r, d in lg.items() if d < wl}
            if c.tok_mv:
                d, s = 'T:' + c.tok_mv[0], 'T:' + c.tok_mv[1]
                for m in (vm, lg):
                    m.pop(d, None)
                    if s in m:
                        m[d] = m.pop(s)
            if c.kind in ('vmem', 'dma'):
                vm = {r: d + 1 for r, d in vm.items()}
                for r in c.wr: vm[r] = 0
                for t in c.tok_w: vm['T:' + t] = 0
            elif c.kind == 'ds':
                lg = {r: d + 1 for r, d in lg.items()}
                for r in c.wr: lg[r] = 0
                for t in c.tok_w: lg['T:' + t] = 0
            elif c.kind == 'smem':
                sm |= set(c.wr)
                if not c.wr: sm.add('?')
            return (vm, lg, sm)

        def merge(a, b):
            if a is None: return b, True
            ch = False
            out = []
            for k in (0, 1):
                m = dict(a[k])
                for r, d in b[k].items():
                    if r not in m or d < m[r]:
                        m[r] = d; ch = True
                out.append(m)
            s = a[2] | b[2]
            if s != a[2]: ch = True
            out.append(s)
            return tuple(out), ch

        def run():
            for _round in range(50):
                before = {k: list(v) for k, v in need.items()}
                instate = [None] * n
                instate[0] = ({}, {}, set())
                work = [0]
                inwork = {0}
                while work:
                    i = work.pop()
                    inwork.discard(i)
                    out = transfer(i, instate[i])
                    for s in succ[i]:
                        m, ch = merge(instate[s], out)
                        if ch:
                            instate[s] = m
                            if s not in inwork:
                                work.append(s); inwork.add(s)
                if need == before:
                    return instate
            raise RuntimeError('waitcnt pass did not converge')

        instate = run()
        for _clean in range(6):
            old = {k: list(v) for k, v in need.items()}
            need.clear()
            for i in old:
                if instate[i] is not None:
                    transfer(i, instate[i])
            instate = run()
            if need == old:
                break
        new = []
        for i, c in enumerate(code):
            if i in need and instate[i] is not None:
                nv, nl = need[i]
                parts = []
                if nv is not None: parts.append('vmcnt(%d)' % nv)
                if nl is not None: parts.append('lgkmcnt(%d)' % nl)
                new.append(Ins('s_waitcnt ' + ' '.join(parts)))
            new.append(c)
        self.code = new

    def insert_nops(self):
        code = self.code
        succ = self._succ()
        pred = defaultdict(list)
        for i, s in enumerate(succ):
            for j in s: pred[j].append(i)
        VALU = ('valu', 'trans')

        def required(p, c):
            w = 0
            pw = set(p.wr)
            if p.kind in VALU:
                vw = {r for r in pw if r[0] in 'va' and r != 'vcc'}
                sw = {r for r in pw if r[0] == 's' or r == 'vcc'}
                if c.kind == 'mfma' and vw & set(c.srcab + c.srcc): w = max(w, 2)
                if c.kind in VALU:
                    if c.isdpp and vw & set(c.rd): w = max(w, 2)
                    if c.mn.startswith('v_permlane') and vw & set(c.rd): w = max(w, 2)
                    if (c.mn.startswith('v_readlane') or c.mn.startswith('v_readfirstlane')) and vw & set(c.rd):
                        w = max(w, 1)
                    if sw & set(c.lane_sel): w = max(w, 4)
                    if sw & set(c.rd): w = max(w, 2)
                    if c.mn.startswith('v_div_fmas') and 'vcc' in sw: w = max(w, 4)
                    if p.kind == 'trans' and vw & set(c.rd + c.wr): w = max(w, 1)
                    if ('sdwa' in p.mn or 'op_sel' in p.mods) and vw & set(c.rd + c.wr): w = max(w, 1)
                if c.kind == 'mfma' and p.kind == 'trans' and vw & set(c.rd): w = max(w, 2)
                if c.kind in ('vmem', 'dma') and sw & set(c.rd): w = max(w, 5)
                if c.kind in ('salu', 'smem', 'cbranch') and sw & set(c.rd): w = max(w, 1)
            if p.kind == 'mfma':
                P = p.passes
                full = {4: 8, 8: 12}[P]
                if c.kind == 'mfma':
                    if pw & set(c.srcab): w = max(w, full)
                    if pw & set(c.srcc):
                        if not (c.srcc == p.wr and c.passes == P): w = max(w, P + 2)
                    elif pw & set(c.wr):
                        w = max(w, P + 2)
                elif c.kind in VALU or c.kind in ('vmem', 'ds', 'dma'):
                    if pw & set(c.rd + c.wr): w = max(w, full)
                if c.kind in VALU and set(p.srcc) & set(c.wr): w = max(w, P - 1)
                if c.kind in ('vmem', 'ds') and set(p.srcc) & set(c.wr): w = max(w, P - 1)
            if p.kind == 'salu' and 'm0' in pw and c.kind == 'dma': w = max(w, 1)
            if p.kind == 'salu' and 'exec' in pw and c.kind in VALU and c.isdpp: w = max(w, 0)
            if p.storedata and set(p.storedata) & set(c.wr):
                w = max(w, 2)
            return w

        WIN = 12
        extra = defaultdict(int)
        for _round in range(20):
            changed = False
            for i, c in enumerate(code):
                if c.kind in ('pseudo', 'label', 'directive', 'nop', 'waitcnt', 'end', 'branch'):
                    continue
                short = 0
                stack = [(j, extra[i]) for j in pred[i]]
                seen = {}
                while stack:
                    j, dist = stack.pop()
                    if j in seen and seen[j] <= dist: continue
                    seen[j] = dist
                    p = code[j]
                    if p.states():
                        r = required(p, c)
                        if r > dist: short = max(short, r - dist)
                    nd = dist + p.states() + extra[j]
                    if nd < WIN:
                        for k in pred[j]: stack.append((k, nd))
                if short:
                    extra[i] += short
                    changed = True
            if not changed:
                break
        else:
            raise RuntimeError('hazard pass did not converge')
        new = []
        self.nops_inserted = 0
        for i, c in enumerate(code):
            if extra[i]:
                new.append(Ins('s_nop %d' % (extra[i] - 1)))
                self.nops_inserted += 1
            new.append(c)
        self.code = new

    def finalize(self):
        self.insert_waits()
        self.insert_nops()

    def maxregs(self):
        mv = ma = ms = -1
        for c in self.code:
            for r in c.rd + c.wr:
                if re.match(r'^v\d+$', r): mv = max(mv, int(r[1:]))
                elif re.match(r'^a\d+$', r): ma = max(ma, int(r[1:]))
                elif re.match(r'^s\d+$', r): ms = max(ms, int(r[1:]))
        return mv + 1, ma + 1, ms + 1

    def text(self):
        out = ['.globl %s' % self.name, '.p2align 8', '.type %s,@function' % self.name, '%s:' % self.name]
        for c in self.code:
            if c.kind == 'label': out.append(c.text)
            elif c.text: out.append('    ' + c.text)
        return '\n'.join(out) + '\n'

    def descriptor(self, min_vgpr=0):
        nv, na, ns = self.maxregs()
        acc = max(4, (nv + 3) // 4 * 4)
        nfv = acc + na if na else nv
        nfv = max(nfv, min_vgpr)
        return '''.section .rodata,"a"
.p2align 6
.amdhsa_kernel %s
  .amdhsa_next_free_vgpr %d
  .amdhsa_next_free_sgpr %d
  .amdhsa_accum_offset %d
  .amdhsa_group_segment_fixed_size 0
  .amdhsa_kernarg_size 120
  .amdhsa_user_sgpr_count 2
  .amdhsa_user_sgpr_kernarg_segment_ptr 1
  .amdhsa_system_sgpr_workgroup_id_x 1
  .amdhsa_float_denorm_mode_32 3
  .amdhsa_float_denorm_mode_16_64 3
.end_amdhsa_kernel
''' % (self.name, nfv, max(ns, 8), acc)


def build_file(header, launches, kernels):
    out = [header.rstrip('\n')]
    for name, g, b, lds in launches:
        out.append('; @launch kernel=%s grid=(%d,1,1) block=(%d,1,1) lds=%d' % (name, g, b, lds))
    out.append('.amdgcn_target "amdgcn-amd-amdhsa--gfx950"')
    out.append('.text')
    for k in kernels:
        out.append(k.text())
    for k in kernels:
        out.append(k.descriptor())
    return '\n'.join(out)


def vr(b, n):
    return 'v[%d:%d]' % (b, b + n - 1) if n > 1 else 'v%d' % b
def ar(b, n):
    return 'a[%d:%d]' % (b, b + n - 1) if n > 1 else 'a%d' % b
def sr(b, n):
    return 's[%d:%d]' % (b, b + n - 1) if n > 1 else 's%d' % b
```

```python
from asmlib import *

MB = 1 << 20
WS_MODP = 0
WS_MOD = 128 * 1024
WS_UTP = 256 * 1024
WS_H1 = 1 * MB
WS_KV = 4 * MB
WS_CTX = 36 * MB
WS_QB = 52 * MB
WS_X1 = 60 * MB
WS_Y = 64 * MB
WS_STAT = 66 * MB
WS_UT = 67 * MB
WS_ACT = 68 * MB
WS_PROF = 96 * MB
WS_SIZE = 256 * MB

KA = dict(x=0, ckv=8, wq=16, wuk=24, wuv=32, wo=40, bx=48, wg=56, wu=64, wd=72, c=80, wmod=88, out=96, dbg=104, ws=112)
SZ = dict(x=2*MB, ckv=2*MB, wq=4*MB, wuk=4*MB, wuv=4*MB, wo=4*MB, wg=512*1376*2, wu=512*1376*2, wd=512*1376*2,
          c=1024, wmod=512*3072*2, out=2*MB, dbg=256, ws=WS_SIZE)

def load_srds(k, table):
    for name, b in table:
        k('s_load_dwordx2 s[%d:%d], s[0:1], %d' % (b, b + 1, KA[name]))
    for name, b in table:
        k('s_mov_b32 s%d, 0x%x' % (b + 2, SZ[name]))
        k('s_mov_b32 s%d, 0x20000' % (b + 3))
    k('s_waitcnt lgkmcnt(0)')

def m16(d, a, b, c=None):
    return 'v_mfma_f32_16x16x32_bf16 %s, %s, %s, %s' % (d, a, b, d if c is None else c)
def m32(d, a, b, c=None):
    return 'v_mfma_f32_32x32x16_bf16 %s, %s, %s, %s' % (d, a, b, d if c is None else c)


class Stream:
    def __init__(self, mfmas, alu_cap, total_cap=None):
        self.m = list(mfmas)
        n = len(self.m)
        self.mem = [[] for _ in range(n)]
        self.alu = [[] for _ in range(n)]
        self.pre = [[] for _ in range(n)]
        self.cost = [0] * n
        self.tail = []
        self.cap = alu_cap

    def _c(self, ins):
        t = ins[0] if isinstance(ins, tuple) else ins
        if not t: return 0
        return 2 if t.split()[0] in TRANS else 1

    def put_mem(self, g, ins, force=False):
        n = len(self.m)
        g0 = g
        while g < n and (self.mem[g] or self.cost[g] + 1 > self.cap) and not force:
            g += 1
        if g >= n:
            self.tail.append(ins)
            return n
        self.mem[g].append(ins); self.cost[g] += 1
        return g

    def put_alu(self, g, ins, force=False):
        n = len(self.m)
        c = self._c(ins)
        while g < n and self.cost[g] + c > self.cap and not force:
            g += 1
        if g >= n:
            self.tail.append(ins)
            return n
        self.alu[g].append(ins); self.cost[g] += c
        return g

    def put_pre(self, g, ins):
        self.pre[g].append(ins)

    def put_seq(self, g, seq):
        last_kind = None
        for ins in seq:
            t = ins[0] if isinstance(ins, tuple) else ins
            ismem = t.split()[0].startswith(('ds_', 'buffer_', 'global_')) if t else False
            if ismem:
                if last_kind is not None: g += 1
                g = self.put_mem(g, ins)
                last_kind = 'mem'
            else:
                g = self.put_alu(g, ins)
                last_kind = 'alu'
        return g

    def emit(self, k):
        def e(ins):
            if isinstance(ins, tuple):
                if ins[0] == '': k.code.append(Ins('', **ins[1]))
                else: k(ins[0], **ins[1])
            else: k(ins)
        for g, m in enumerate(self.m):
            for i in self.pre[g]: e(i)
            e(m)
            for i in self.mem[g]: e(i)
            for i in self.alu[g]: e(i)
        for i in self.tail: e(i)

def NEED(*toks): return ('', dict(tok_r=toks))


def wave_sum(k, regs, tmp):
    for sh in (8, 4, 2, 1):
        for r in regs:
            k('v_add_f32_dpp v%d, v%d, v%d row_ror:%d row_mask:0xf bank_mask:0xf' % (r, r, r, sh))
    for op in ('v_permlane16_swap_b32', 'v_permlane32_swap_b32'):
        for r, t in zip(regs, tmp): k('v_mov_b32 v%d, v%d' % (t, r))
        for r, t in zip(regs, tmp): k('%s v%d, v%d' % (op, r, t))
        for r, t in zip(regs, tmp): k('v_add_f32 v%d, v%d, v%d' % (r, r, t))

def rbf(d, s):
    return ['v_cvt_pk_bf16_f32 v%d, v%d, v%d' % (d, s, s), 'v_and_b32 v%d, 0xffff0000, v%d' % (d, d)]

PROF_S = 70
def stamp(i):
    return 's_memrealtime s[%d:%d]' % (PROF_S + 2 * i, PROF_S + 2 * i + 1)

def prof_end(k, li, n, WS, sW, vt):
    k('s_waitcnt vmcnt(0)')
    k(stamp(n - 1))
    k('s_waitcnt lgkmcnt(0)')
    k('s_lshl_b32 s100, s2, 8')
    k('s_lshl_b32 s101, s%d, 6' % sW)
    k('s_add_u32 s100, s100, s101')
    k('s_add_u32 s100, s100, %d' % (WS_PROF + li * 65536))
    k('v_mov_b32 v%d, 0' % vt)
    k('s_mov_b64 exec, 1')
    for i in range(n):
        k('v_mov_b32 v%d, s%d' % (vt + 1, PROF_S + 2 * i))
        k('buffer_store_dword v%d, v%d, s[%d:%d], s100 offen offset:%d' % (vt + 1, vt, WS, WS + 3, 4 * i))
    k('v_mov_b32 v%d, %d' % (vt + 1, n))
    k('buffer_store_dword v%d, v%d, s[%d:%d], s100 offen offset:60' % (vt + 1, vt, WS, WS + 3))

import struct as _st, math as _m
QSCALE = 128 ** -0.5 * _m.log2(_m.e)
QSCALE_BITS = _st.unpack('<I', _st.pack('<f', QSCALE))[0]
```

```python
from common import *

def gen_k1(prof=False):
    k = Kernel('kv_kernel')
    k('s_cmp_ge_u32 s2, 256')
    k('s_cbranch_scc1 K1_END')
    if prof: k(stamp(0))
    CKV, WUK, WUV, WS, X, WMOD, C, DBG = 8, 12, 16, 20, 24, 28, 32, 36
    load_srds(k, [('wmod', WMOD), ('c', C), ('ckv', CKV), ('wuk', WUK), ('wuv', WUV), ('ws', WS), ('x', X), ('dbg', DBG)])
    sW, sHD, sMT, sAg, sAl, sWg, sWl, sW2g, sT, sT2, sKV, sRR, sCB = range(40, 53)
    sKo = list(range(56, 64))
    ACC1, ACC2, WR, PK = 0, 128, 192, 216
    vAoff = [224, 225, 226, 227]; vWoff = [228, 229, 230, 231]; vAr = [232, 233]; vWr = list(range(234, 242))
    vKst, vVst = 242, 243
    vXN = list(range(244, 252)); vHo = 252; vL = 253; vFlag = 254; vTid = 255

    k('v_mov_b32 v%d, v0' % vTid)
    k('v_lshrrev_b32 v1, 6, v0')
    k('v_and_b32 v%d, 63, v0' % vL)
    k('v_readfirstlane_b32 s%d, v1' % sW)
    k('s_mul_i32 s%d, s2, 1366' % sRR)
    k('s_lshr_b32 s%d, s%d, 16' % (sRR, sRR))
    k('s_mul_i32 s%d, s%d, 48' % (sT, sRR))
    k('s_sub_u32 s%d, s2, s%d' % (sCB, sT))
    k('v_lshrrev_b32 v2, 3, v0')
    k('v_and_b32 v3, 7, v0')
    k('v_mul_u32_u24 v4, 6144, v2')
    k('v_lshl_add_u32 v4, v3, 4, v4')
    k('s_mul_i32 s%d, s%d, %d' % (sT, sRR, 128 * 6144))
    k('s_lshl_b32 s%d, s%d, 7' % (sT2, sCB))
    k('s_add_u32 s%d, s%d, s%d' % (sT, sT, sT2))
    k('v_lshlrev_b32 v5, 1, v2')
    k('s_lshl_b32 s%d, s%d, 8' % (sT2, sRR))
    for i in range(4):
        k('buffer_load_ushort v%d, v5, s[%d:%d], s%d offen offset:%d' % (8 + i, C, C + 3, sT2, 64 * i))
    for i in range(4):
        k('buffer_load_dwordx4 v[%d:%d], v4, s[%d:%d], s%d offen' % (16 + 4 * i, 19 + 4 * i, WMOD, WMOD + 3, sT))
        if i < 3: k('s_add_u32 s%d, s%d, %d' % (sT, sT, 32 * 6144))
    k('s_lshl_b32 s%d, s2, 13' % sT)
    k('s_lshl_b32 s%d, s%d, 11' % (sT2, sW))
    k('s_add_u32 s%d, s%d, s%d' % (sT, sT, sT2))
    k('v_lshlrev_b32 v6, 4, v%d' % vL)
    k('buffer_load_dwordx4 v[32:35], v6, s[%d:%d], s%d offen' % (X, X + 3, sT))
    k('buffer_load_dwordx4 v[36:39], v6, s[%d:%d], s%d offen offset:1024' % (X, X + 3, sT))
    k('s_and_b32 s%d, s2, 7' % sHD)
    k('s_lshl_b32 s%d, s%d, 2' % (sHD, sHD))
    k('s_bfe_u32 s%d, s2, 0x20003' % sT)
    k('s_add_u32 s%d, s%d, s%d' % (sHD, sHD, sT))
    k('s_lshr_b32 s%d, s2, 5' % sMT)
    k('s_lshl_b32 s%d, s%d, 2' % (sT, sMT))
    k('s_add_u32 s%d, s%d, s%d' % (sT, sT, sW))
    k('s_lshl_b32 s%d, s%d, 16' % (sAg, sT))
    k('s_lshl_b32 s%d, s%d, 5' % (sKV, sHD))
    k('s_add_u32 s%d, s%d, s%d' % (sKV, sKV, sT))
    k('s_lshl_b32 s%d, s%d, 15' % (sKV, sKV))
    k('s_add_u32 s%d, s%d, %d' % (sKV, sKV, WS_KV))
    for i in range(8):
        k('s_add_u32 s%d, s%d, %d' % (sKo[i], sKV, 4096 * i))
    k('s_mul_i32 s%d, s%d, 24576' % (sAl, sW))
    k('s_add_u32 s%d, s%d, 65536' % (sAl, sAl))
    k('s_lshl_b32 s%d, s%d, 12' % (sWl, sW))
    k('s_lshl_b32 s%d, s%d, 8' % (sT, sHD))
    k('s_lshl_b32 s%d, s%d, 17' % (sWg, sW))
    k('s_add_u32 s%d, s%d, s%d' % (sWg, sWg, sT))
    k('s_lshl_b32 s%d, s%d, 18' % (sW2g, sW))
    k('s_add_u32 s%d, s%d, s%d' % (sW2g, sW2g, sT))
    k('v_lshrrev_b32 v40, 3, v%d' % vL)
    k('v_and_b32 v41, 7, v%d' % vL)
    k('v_lshrrev_b32 v42, 4, v%d' % vL)
    k('v_xor_b32 v43, v41, v42')
    k('v_lshlrev_b32 v44, 10, v40')
    k('v_lshl_add_u32 v%d, v43, 4, v44' % vAoff[0])
    k('v_xor_b32 v45, 64, v%d' % vAoff[0])
    k('v_add_u32 v%d, %d, v45' % (vAoff[1], 7 * 1024))
    k('v_add_u32 v%d, %d, v%d' % (vAoff[2], 14 * 1024, vAoff[0]))
    k('v_add_u32 v%d, %d, v45' % (vAoff[3], 21 * 1024))
    k('v_and_b32 v46, 15, v%d' % vL)
    k('v_lshlrev_b32 v47, 1, v42')
    k('v_xor_b32 v47, v46, v47')
    k('v_lshlrev_b32 v48, 13, v42')
    k('v_lshl_add_u32 v%d, v47, 4, v48' % vWoff[0])
    k('v_add_u32 v%d, %d, v%d' % (vWoff[1], 4 * 8192 - 1024, vWoff[0]))
    k('v_xor_b32 v49, 128, v%d' % vWoff[0])
    k('v_add_u32 v%d, %d, v49' % (vWoff[2], 8 * 8192 - 2048))
    k('v_add_u32 v%d, %d, v49' % (vWoff[3], 12 * 8192 - 3072))

    def wslot(s): return 65536 + (s - 11) * 16384 if 11 <= s <= 14 else (s % 4) * 16384
    def dmaA(s):
        o = []
        for h in range(2):
            o.append('s_add_u32 m0, s%d, %d' % (sAl, (s % 3) * 8192 + h * 4096))
            o.append('s_add_u32 s%d, s%d, %d' % (sT, sAg, s * 128 + h * 32768))
            for p in range(4):
                o.append(('buffer_load_dwordx4 v%d, s[%d:%d], s%d offen offset:%d lds' % (vAoff[p], CKV, CKV + 3, sT, p * 1024),
                          dict(tok_w=['A%d' % s])))
        return o
    def dmaW(s):
        o = ['s_add_u32 m0, s%d, %d' % (sWl, wslot(s))]
        if s < 8:
            o.append('s_add_u32 s%d, s%d, %d' % (sT2, sWg, s * 64 * 8192)); srd = WUK
        else:
            j = s - 8
            o.append('s_add_u32 s%d, s%d, %d' % (sT2, sW2g, (j & 3) * 128 * 8192 + (j >> 2) * 128)); srd = WUV
        for p in range(4):
            o.append(('buffer_load_dwordx4 v%d, s[%d:%d], s%d offen offset:%d lds' % (vWoff[p], srd, srd + 3, sT2, p * 1024),
                      dict(tok_w=['W%d' % s])))
        return o
    def emit(seq):
        for i in seq:
            if isinstance(i, tuple):
                if i[0] == '': k.code.append(Ins('', **i[1]))
                else: k(i[0], **i[1])
            else: k(i)
    for s in range(3):
        emit(dmaW(s)); emit(dmaA(s))
    k('v_lshrrev_b32 v47, 1, v46')
    k('v_xor_b32 v47, v42, v47')
    k('v_lshlrev_b32 v48, 7, v46')
    k('v_lshl_add_u32 v48, v47, 4, v48')
    k('v_add_u32 v%d, s%d, v48' % (vAr[0], sAl))
    k('v_xor_b32 v%d, 64, v%d' % (vAr[1], vAr[0]))
    k('v_lshrrev_b32 v50, 2, v46')
    k('v_and_b32 v51, 3, v%d' % vL)
    k('v_and_b32 v52, 1, v42')
    k('v_lshl_add_u32 v53, v42, 3, v50')
    k('v_lshl_add_u32 v54, v52, 2, v50')
    k('v_lshlrev_b32 v55, 8, v53')
    k('v_lshl_add_u32 v55, v54, 5, v55')
    k('v_lshl_add_u32 v%d, v51, 3, v55' % vWr[0])
    for dt in range(1, 8):
        k('v_xor_b32 v%d, %d, v%d' % (vWr[dt], dt * 32, vWr[0]))
    k('v_lshrrev_b32 v56, 1, v42')
    k('v_lshlrev_b32 v57, 9, v52')
    k('v_lshl_add_u32 v58, v56, 10, v57')
    k('v_lshrrev_b32 v59, 3, v46')
    k('v_lshl_add_u32 v58, v59, 8, v58')
    k('v_and_b32 v59, 7, v46')
    k('v_lshl_add_u32 v%d, v59, 4, v58' % vKst)
    k('v_lshl_add_u32 v58, v56, 12, v57')
    k('v_lshl_add_u32 v%d, v46, 4, v58' % vVst)
    k('v_lshlrev_b32 v%d, 9, v%d' % (vHo, vL))

    for i in range(4):
        c = 8 + i
        k('v_lshlrev_b32 v%d, 16, v%d' % (c, c))
        k('v_mul_f32 v12, 0xbfb8aa3b, v%d' % c)
        k('v_exp_f32 v12, v12')
        k('v_add_f32 v12, 1.0, v12')
        k('v_rcp_f32 v12, v12')
        k('v_mul_f32 v%d, v%d, v12' % (c, c))
        for l in rbf(c, c): k(l)
    for i in range(4):
        for j in range(4):
            w = 16 + 4 * i + j
            k('v_lshlrev_b32 v12, 16, v%d' % w)
            k('v_and_b32 v13, 0xffff0000, v%d' % w)
            if i == 0:
                k('v_mul_f32 v%d, v12, v8' % (64 + 2 * j))
                k('v_mul_f32 v%d, v13, v8' % (65 + 2 * j))
            else:
                k('v_fmac_f32 v%d, v12, v%d' % (64 + 2 * j, 8 + i))
                k('v_fmac_f32 v%d, v13, v%d' % (65 + 2 * j, 8 + i))
    for j in range(4): k('v_permlane32_swap_b32 v%d, v%d' % (64 + j, 68 + j))
    for j in range(4): k('v_add_f32 v%d, v%d, v%d' % (64 + j, 64 + j, 68 + j))
    for j in range(2): k('v_permlane16_swap_b32 v%d, v%d' % (64 + j, 66 + j))
    for j in range(2): k('v_add_f32 v%d, v%d, v%d' % (64 + j, 64 + j, 66 + j))
    for j in range(2): k('v_add_f32_dpp v%d, v%d, v%d row_ror:8 row_mask:0xf bank_mask:0xf' % (64 + j, 64 + j, 64 + j))
    k('v_lshlrev_b32 v12, 5, v41')
    k('v_lshl_add_u32 v12, v42, 3, v12')
    k('s_lshl_b32 s%d, s%d, 8' % (sT, sW))
    k('v_add_u32 v12, s%d, v12' % sT)
    k('ds_write_b64 v12, v[64:65] offset:%d' % (3 * 16384), tok_w=['modw'])

    for r in range(2):
        for j in range(4):
            k('v_lshlrev_b32 v%d, 16, v%d' % (72 + 8 * r + 2 * j, 32 + 4 * r + j))
            k('v_and_b32 v%d, 0xffff0000, v%d' % (73 + 8 * r + 2 * j, 32 + 4 * r + j))
        k('v_add_f32 v%d, v%d, v%d' % (88 + r, 72 + 8 * r, 73 + 8 * r))
        for j in range(2, 8): k('v_add_f32 v%d, v%d, v%d' % (88 + r, 88 + r, 72 + 8 * r + j))
    wave_sum(k, [88, 89], [90, 91])
    for r in range(2):
        k('v_mul_f32 v%d, 0x3b000000, v%d' % (88 + r, 88 + r))
        for j in range(8):
            k('v_sub_f32 v12, v%d, v%d' % (72 + 8 * r + j, 88 + r))
            if j == 0: k('v_mul_f32 v%d, v12, v12' % (92 + r))
            else: k('v_fmac_f32 v%d, v12, v12' % (92 + r))
    wave_sum(k, [92, 93], [90, 91])
    for r in range(2):
        v = 92 + r
        k('v_mul_f32 v%d, 0x3b000000, v%d' % (v, v))
        for l in rbf(v, v): k(l)
        k('v_add_f32 v%d, 0x3727c5ac, v%d' % (v, v))
        for l in rbf(v, v): k(l)
        k('v_sqrt_f32 v%d, v%d' % (v, v))
        for l in rbf(v, v): k(l)
        k('v_rcp_f32 v%d, v%d' % (v, v))
        for l in rbf(88 + r, 88 + r): k(l)
        for j in range(4):
            a, b = 72 + 8 * r + 2 * j, 73 + 8 * r + 2 * j
            k('v_sub_f32 v%d, v%d, v%d' % (a, a, 88 + r))
            k('v_sub_f32 v%d, v%d, v%d' % (b, b, 88 + r))
            k('v_cvt_pk_bf16_f32 v12, v%d, v%d' % (a, b))
            k('v_lshlrev_b32 v%d, 16, v12' % a)
            k('v_and_b32 v%d, 0xffff0000, v12' % b)
            k('v_mul_f32 v%d, v%d, v%d' % (a, a, v))
            k('v_mul_f32 v%d, v%d, v%d' % (b, b, v))
            k('v_cvt_pk_bf16_f32 v%d, v%d, v%d' % (vXN[4 * r + j], a, b))

    k.need('modw', 'W0', 'A0')
    k('s_barrier')
    if prof: k(stamp(1)); k('s_waitcnt lgkmcnt(0)')
    k('v_lshlrev_b32 v12, 2, v%d' % vL)
    for i in range(4):
        k('ds_read_b32 v%d, v12 offset:%d' % (16 + i, 3 * 16384 + 256 * i))
    def rdA(s, kt, ks):
        a = ((2 * s + ks) * 4 + kt) * 4
        return 'ds_read_b128 a[%d:%d], v%d offset:%d' % (a, a + 3, vAr[ks], (s % 3) * 8192 + kt * 2048)
    def grp(G):
        s = G // 8; i = G % 8
        if s < 8: return s, i, (0, 1)
        return s, i % 4, (2 * (i // 4), 2 * (i // 4) + 1)
    def rdW(G):
        s, dt, kss = grp(G)
        o = []
        for e, ks in enumerate(kss):
            for rd in range(2):
                d = WR + (G % 3) * 8 + e * 4 + rd * 2
                rowb = 256 if s < 8 else 128
                va = vWr[dt] if s < 8 else (vWr[dt] if 11 <= s <= 14 else vWr2[dt])
                o.append('ds_read_b64_tr_b16 v[%d:%d], v%d offset:%d' % (d, d + 1, va,
                                                                       (wslot(s) & 65535) + (32 * ks + 4 * rd) * rowb))
        return o
    vWr2 = [vAoff[0], vAoff[1], vAoff[2], vAoff[3]]
    for kt in range(4):
        for ks in range(2): k(rdA(0, kt, ks), tok_w=['Ard0'])
    for G in (0, 1):
        for l in rdW(G): k(l)
    k('v_add_f32 v16, v16, v17')
    k('v_add_f32 v18, v18, v19')
    k('v_add_f32 v16, v16, v18')
    k('v_lshlrev_b32 v13, 22, v%d' % vTid)
    k('v_and_b32 v13, 0xf0000000, v13')
    k('v_add_u32 v12, v12, v13')
    k('s_mul_i32 s%d, s%d, 12288' % (sT, sRR))
    k('s_lshl_b32 s%d, s%d, 8' % (sT2, sCB))
    k('s_add_u32 s%d, s%d, s%d' % (sT, sT, sT2))
    k('buffer_store_dword v16, v12, s[%d:%d], s%d offen offset:%d sc1' % (WS, WS + 3, sT, WS_MODP), tok_w=['modst'])
    k.need('Ard0')
    emit(dmaA(3))

    mf = []
    for G in range(128):
        s, dt, kss = grp(G)
        for kt in range(4):
            for e, ks in enumerate(kss):
                w = vr(WR + (G % 3) * 8 + e * 4, 4)
                if s < 8:
                    kstep = 2 * s + ks
                    acc = vr(ACC1 + (dt * 4 + kt) * 4, 4)
                    c = ar((kstep * 4 + kt) * 4, 4)
                    mf.append(m16(acc, w, c, '0' if kstep == 0 else None))
                else:
                    kstep = ((s - 8) & 3) * 4 + ks
                    base = ACC2 if s < 12 else ACC1
                    acc = vr(base + (dt * 4 + kt) * 4, 4)
                    c = ar((kstep * 4 + kt) * 4, 4)
                    mf.append(m16(acc, c, w, '0' if kstep == 0 else None))
    S = Stream(mf, 2)
    for G in range(2, 128):
        for i, l in enumerate(rdW(G)):
            S.put_mem((G - 2) * 8 + 2 * i, l, force=True)
    for s in range(16):
        b = s * 64
        if s + 1 < 8:
            S.put_pre(b + 1, NEED('A%d' % (s + 1)))
            g = b + 1
            for kt in range(4):
                for ks in range(2):
                    g = S.put_mem(g, (rdA(s + 1, kt, ks), dict(tok_w=['Ard%d' % (s + 1)])))
        if s + 1 < 16:
            S.put_pre(b + 24, NEED('W%d' % (s + 1), 'Ard7'))
            S.put_pre(b + 24, 's_barrier')
        g = b + 24
        if s == 5:
            seq = ['v_lshrrev_b32 v%d, 3, v%d' % (PK, vL),
                   'v_and_b32 v%d, 2, v%d' % (PK + 1, PK),
                   'v_and_b32 v%d, 7, v%d' % (PK + 2, vL),
                   'v_xor_b32 v%d, v%d, v%d' % (PK + 1, PK + 1, PK + 2),
                   'v_lshlrev_b32 v%d, 13, v%d' % (PK, PK),
                   'v_lshl_add_u32 v%d, v%d, 4, v%d' % (vWoff[0], PK + 1, PK),
                   'v_xor_b32 v%d, 64, v%d' % (PK, vWoff[0]),
                   'v_add_u32 v%d, %d, v%d' % (vWoff[1], 8 * 8192 - 1024, PK),
                   'v_add_u32 v%d, %d, v%d' % (vWoff[2], 16 * 8192 - 2048, vWoff[0]),
                   'v_add_u32 v%d, %d, v%d' % (vWoff[3], 24 * 8192 - 3072, PK)]
            S.put_seq(b + 2, seq)
        for ws_ in {5: [8], 6: [9, 11, 12], 7: [10, 13, 14], 8: [15]}.get(s, [s + 3] if s < 5 else []):
            g = S.put_seq(g, dmaW(ws_))
            assert g < b + 64
        if s == 8:
            S.put_seq(b + 2, ['v_add_u32 v%d, 0x10000, v%d' % (vWr[dt], vWr2[dt]) for dt in range(4)])
        if s + 4 < 8:
            g = S.put_seq(g + 1, [NEED('Ard%d' % (s + 1))] + dmaA(s + 4))
            assert g < b + 64, g
        if s == 1:
            S.put_seq(b + 40, ['v_lshlrev_b32 v%d, 12, v%d' % (PK, vTid), 'v_mov_b32 v%d, 1' % (PK + 1), NEED('modst'),
                              'buffer_atomic_add v%d, v%d, s[%d:%d], 0 offen sc1' % (PK + 1, PK, DBG, DBG + 3)])
        if s == 6:
            seq = ['v_lshrrev_b32 v%d, 4, v%d' % (PK, vL),
                   'v_bfe_u32 v%d, v%d, 2, 2' % (PK + 1, vL),
                   'v_lshl_add_u32 v%d, v%d, 3, v%d' % (PK + 2, PK, PK + 1),
                   'v_lshlrev_b32 v%d, 7, v%d' % (PK + 2, PK + 2),
                   'v_bfe_u32 v%d, v%d, 3, 2' % (PK + 1, vL),
                   'v_lshl_add_u32 v%d, v%d, 5, v%d' % (PK + 2, PK + 1, PK + 2),
                   'v_and_b32 v%d, 3, v%d' % (PK + 1, vL),
                   'v_lshl_add_u32 v%d, v%d, 3, v%d' % (vWr2[0], PK + 1, PK + 2)]
            seq += ['v_xor_b32 v%d, %d, v%d' % (vWr2[dt], dt * 32, vWr2[0]) for dt in range(1, 4)]
            S.put_seq(b + 2, seq)
    g = 8 * 64 + 36
    n = 0
    for db in range(4):
        for kt in range(4):
            p = PK + (n % 2) * 4; n += 1
            a0 = ACC1 + ((2 * db) * 4 + kt) * 4; a1 = ACC1 + ((2 * db + 1) * 4 + kt) * 4
            off = (kt >> 1) * 8192 + db * 2048 + (kt & 1) * 128
            seq = ['v_mul_f32 v%d, 0x%08x, v%d' % (r, QSCALE_BITS, r) for r in list(range(a0, a0 + 4)) + list(range(a1, a1 + 4))]
            seq += ['v_cvt_pk_bf16_f32 v%d, v%d, v%d' % (p, a0, a0 + 1), 'v_cvt_pk_bf16_f32 v%d, v%d, v%d' % (p + 1, a0 + 2, a0 + 3),
                   'v_cvt_pk_bf16_f32 v%d, v%d, v%d' % (p + 2, a1, a1 + 1), 'v_cvt_pk_bf16_f32 v%d, v%d, v%d' % (p + 3, a1 + 2, a1 + 3),
                   'buffer_store_dwordx4 v[%d:%d], v%d, s[%d:%d], s%d offen offset:%d sc1' % (p, p + 3, vKst, WS, WS + 3, sKo[off >> 12], off & 4095)]
            g = S.put_seq(g, seq)
    assert g < 12 * 64 - 2, g
    def vepi(base, half, dt, kt32, p):
        a0 = base + (dt * 4 + 2 * kt32) * 4; a1 = a0 + 4
        d = half * 4 + dt
        off = 16384 + kt32 * 8192 + (d >> 1) * 1024 + (d & 1) * 256
        return ['v_cvt_pk_bf16_f32 v%d, v%d, v%d' % (p, a0, a0 + 1), 'v_cvt_pk_bf16_f32 v%d, v%d, v%d' % (p + 1, a0 + 2, a0 + 3),
                'v_cvt_pk_bf16_f32 v%d, v%d, v%d' % (p + 2, a1, a1 + 1), 'v_cvt_pk_bf16_f32 v%d, v%d, v%d' % (p + 3, a1 + 2, a1 + 3),
                'buffer_store_dwordx4 v[%d:%d], v%d, s[%d:%d], s%d offen offset:%d sc1' % (p, p + 3, vVst, WS, WS + 3, sKo[off >> 12], off & 4095)]
    S.put_seq(3 * 64 + 16, ['v_mov_b32 v%d, 0' % vFlag,
                            'buffer_load_dword v%d, v%d, s[%d:%d], 0 offen sc1' % (vFlag, vFlag, DBG, DBG + 3)])
    g0 = 4 * 64 + 2
    for l in ['K1_POLL:', 'v_readfirstlane_b32 s%d, v%d' % (sT, vFlag), 's_cmp_ge_u32 s%d, 256' % sT, 's_cbranch_scc1 K1_READY',
              's_sleep 8', 'v_mov_b32 v%d, 0' % vFlag,
              'buffer_load_dword v%d, v%d, s[%d:%d], 0 offen sc1' % (vFlag, vFlag, DBG, DBG + 3), 's_branch K1_POLL', 'K1_READY:']:
        S.put_pre(g0, l)
    H = ACC2
    seq = ['v_lshlrev_b32 v%d, 5, v%d' % (vFlag, vL),
           's_lshl_b32 s%d, s2, 2' % sCB, 's_add_u32 s%d, s%d, s%d' % (sCB, sCB, sW), 's_mul_i32 s%d, s%d, 12' % (sCB, sCB),
           'v_cmp_gt_u32 vcc, 3, v%d' % vL, 'v_lshl_add_u32 v%d, v%d, 2, s%d' % (vTid, vL, sCB), 'v_mov_b32 v%d, 0xf0000000' % (PK + 7),
           'v_cndmask_b32 v%d, v%d, v%d, vcc' % (vTid, PK + 7, vTid)]
    for pt in range(4):
        seq.append('s_mov_b32 s%d, %d' % (sRR, WS_MODP + pt * 12288))
        for which in range(2):
            for h in range(2):
                d = H + pt * 16 + which * 8 + h * 4
                seq.append('buffer_load_dwordx4 v[%d:%d], v%d, s[%d:%d], s%d offen offset:%d sc1' % (d, d + 3, vFlag, WS, WS + 3, sRR, which * 2048 + h * 16))
        seq.append('buffer_load_dword v%d, v%d, s[%d:%d], s%d offen sc1' % (PK + 4 + pt, vTid, WS, WS + 3, sRR))
    g = S.put_seq(g0, seq)
    print('k1: partial loads done at gap', g)
    seq = ['v_add_f32 v%d, v%d, v%d' % (PK + 4, PK + 4, PK + 5), 'v_add_f32 v%d, v%d, v%d' % (PK + 6, PK + 6, PK + 7),
           'v_add_f32 v%d, v%d, v%d' % (PK + 4, PK + 4, PK + 6)] + rbf(PK + 4, PK + 4) + ['s_mov_b32 s%d, %d' % (sRR, WS_MOD),
           'buffer_store_dword v%d, v%d, s[%d:%d], s%d offen' % (PK + 4, vTid, WS, WS + 3, sRR)]
    for i in range(16):
        seq += ['v_add_f32 v%d, v%d, v%d' % (H + i, H + i, H + 16 + i), 'v_add_f32 v%d, v%d, v%d' % (H + 32 + i, H + 32 + i, H + 48 + i)]
    for i in range(16):
        seq += ['v_add_f32 v%d, v%d, v%d' % (H + i, H + i, H + 32 + i)]
    t0, t1, t2 = H + 16, H + 17, H + 18
    for i in range(0, 16, 2):
        seq += ['v_cvt_pk_bf16_f32 v%d, v%d, v%d' % (t0, H + i, H + 1 + i), 'v_lshlrev_b32 v%d, 16, v%d' % (H + i, t0),
                'v_and_b32 v%d, 0xffff0000, v%d' % (H + 1 + i, t0)]
    for i in range(8, 16, 2):
        seq += ['v_add_f32 v%d, 1.0, v%d' % (H + i, H + i), 'v_add_f32 v%d, 1.0, v%d' % (H + 1 + i, H + 1 + i),
                'v_cvt_pk_bf16_f32 v%d, v%d, v%d' % (t0, H + i, H + 1 + i), 'v_lshlrev_b32 v%d, 16, v%d' % (H + i, t0),
                'v_and_b32 v%d, 0xffff0000, v%d' % (H + 1 + i, t0)]
    seq += ['s_lshr_b32 s%d, s2, 2' % sRR, 's_lshl_b32 s%d, s%d, 15' % (sRR, sRR), 's_and_b32 s%d, s2, 3' % sCB,
            's_lshl_b32 s%d, s%d, 7' % (sCB, sCB), 's_add_u32 s%d, s%d, s%d' % (sRR, sRR, sCB), 's_lshl_b32 s%d, s%d, 5' % (sCB, sW),
            's_add_u32 s%d, s%d, s%d' % (sRR, sRR, sCB), 's_add_u32 s%d, s%d, %d' % (sRR, sRR, WS_H1)]
    for r in range(2):
        for j in range(4):
            seq += ['v_lshlrev_b32 v%d, 16, v%d' % (t0, vXN[4 * r + j]), 'v_and_b32 v%d, 0xffff0000, v%d' % (t1, vXN[4 * r + j]),
                    'v_mul_f32 v%d, v%d, v%d' % (t0, t0, H + 8 + 2 * j), 'v_mul_f32 v%d, v%d, v%d' % (t1, t1, H + 9 + 2 * j),
                    'v_cvt_pk_bf16_f32 v%d, v%d, v%d' % (t2, t0, t1),
                    'v_lshlrev_b32 v%d, 16, v%d' % (t0, t2), 'v_and_b32 v%d, 0xffff0000, v%d' % (t1, t2),
                    'v_add_f32 v%d, v%d, v%d' % (t0, t0, H + 2 * j), 'v_add_f32 v%d, v%d, v%d' % (t1, t1, H + 1 + 2 * j),
                    'v_cvt_pk_bf16_f32 v%d, v%d, v%d' % (vXN[4 * r + j], t0, t1)]
    g = S.put_seq(g + 16, seq)
    assert g < 8 * 64, g
    gg = 12 * 64 + 4
    n = 0
    for dt in range(4):
        for kt32 in range(2):
            gg = S.put_seq(gg, vepi(ACC2, 0, dt, kt32, PK + (n % 2) * 4)) + 12; n += 1
    S.put_seq(8 * 64 + 34, ['buffer_store_dwordx4 v[%d:%d], v%d, s[%d:%d], s%d offen offset:%d' % (vXN[4 * r], vXN[4 * r] + 3, vHo, WS, WS + 3, sRR, 16 * r) for r in range(2)])
    print('k1: h done at gap', g)
    if prof:
        for i, gg in enumerate((4 * 64, 8 * 64, 12 * 64)):
            S.put_pre(gg, stamp(2 + i)); S.put_pre(gg, 's_waitcnt lgkmcnt(0)')
    S.emit(k)
    if prof: k(stamp(5))
    n = 0
    for dt in range(4):
        for kt32 in range(2):
            emit(vepi(ACC1, 1, dt, kt32, 128 + n * 4)); n += 1
    if prof: prof_end(k, 0, 7, WS, sW, 0)
    k.label('K1_END')
    k('s_endpgm')
    k.finalize()
    return k

if __name__ == '__main__':
    k = gen_k1(True)
    print(k.maxregs(), len(k.code), 'nops', k.nops_inserted)
    open('t_k1.s', 'w').write(build_file('; t', [(k.name, 256, 256, 163840)], [k]))
```

```python
from common import *

NEG_INF = '0xff800000'

def gen_k2(prof=False):
    k = Kernel('attn_kernel')
    k('s_cmp_ge_u32 s2, 256')
    k('s_cbranch_scc1 K2_END')
    if prof: k(stamp(0))
    WQ, WS, WF = 4, 8, 40
    WF = 96
    k('s_load_dwordx2 s[68:69], s[0:1], %d' % KA['wu'])
    load_srds(k, [('wq', WQ), ('ws', WS), ('wg', WF)])
    (sW, sHD, sI, sJ, sN1, sT, sT2, sKVh, sRT, sWl, sV1, sK1, sV2, sK2, sThr, sDiag, sFirst, sM0, sQB, sCtx, sD1, sD2, sLo) = range(12, 35)
    sMask = 36
    OX, OY, SX, SY, NMX, NMY = 0, 64, 128, 160, 192, 208
    vlX, vlY, vmX, vmY, vR, vL16, vCst, vPf = range(224, 232)
    T = 232
    vPfD, vL = 248, 249
    vWo = [250, 251, 252, 253]
    vWr = [224, 225, 226, 227]
    QX, QY, KF, VF, ZR = 0, 32, 64, 128, 192
    O = {'X': OX, 'Y': OY}; S_ = {'X': SX, 'Y': SY}; NM = {'X': NMX, 'Y': NMY}; Q = {'X': QX, 'Y': QY}
    vl = {'X': vlX, 'Y': vlY}; vm = {'X': vmX, 'Y': vmY}

    def emit(seq):
        for i in seq:
            if isinstance(i, tuple):
                if i[0] == '': k.code.append(Ins('', **i[1]))
                else: k(i[0], **i[1])
            else: k(i)

    k('v_lshrrev_b32 v1, 6, v0')
    k('v_and_b32 v%d, 63, v0' % vL)
    k('v_readfirstlane_b32 s%d, v1' % sW)
    k('v_lshlrev_b32 v%d, 4, v%d' % (vL16, vL))
    k('s_and_b32 s%d, s2, 7' % sHD)
    k('s_lshl_b32 s%d, s%d, 2' % (sHD, sHD))
    k('s_bfe_u32 s%d, s2, 0x20003' % sT)
    k('s_add_u32 s%d, s%d, s%d' % (sHD, sHD, sT))
    k('s_lshr_b32 s%d, s2, 5' % sI)
    k('s_lshl_b32 s%d, s%d, 1' % (sI, sI))
    k('s_add_u32 s%d, s%d, s%d' % (sRT, sI, sW))
    k('s_sub_u32 s%d, 28, s%d' % (sT, sI))
    k('s_add_u32 s%d, s%d, s%d' % (sT, sT, sW))
    k('s_add_u32 s%d, s%d, 1' % (sN1, sRT))
    k('s_cmp_lt_u32 s%d, 2' % sW)
    k('s_cselect_b32 s%d, s%d, s%d' % (sRT, sRT, sT))
    k('s_cselect_b32 s%d, s%d, 17' % (sN1, sN1))
    k('s_lshl_b32 s%d, s%d, 12' % (sWl, sW))
    k('v_lshrrev_b32 v2, 4, v%d' % vL)
    k('v_and_b32 v3, 15, v%d' % vL)
    k('v_lshlrev_b32 v4, 2, v2')
    k('v_xor_b32 v4, v3, v4')
    k('v_lshlrev_b32 v5, 13, v2')
    k('v_lshl_add_u32 v%d, v4, 4, v5' % vWo[0])
    for p in range(1, 4): k('v_add_u32 v%d, %d, v%d' % (vWo[p], p * (4 * 8192 - 1024), vWo[0]))
    k('s_lshl_b32 s%d, s%d, 8' % (sD1, sHD))
    k('s_lshl_b32 s%d, s%d, 17' % (sT, sW))
    k('s_add_u32 s%d, s%d, s%d' % (sD1, sD1, sT))
    k('s_lshl_b32 s%d, s%d, 16' % (sD2, sRT))
    k('s_add_u32 s%d, s%d, %d' % (sD2, sD2, WS_H1))
    k('s_lshl_b32 s%d, s%d, 20' % (sKVh, sHD))
    k('s_add_u32 s%d, s%d, %d' % (sKVh, sKVh, WS_KV))
    k('s_add_u32 s%d, s%d, s%d' % (sKVh, sKVh, sWl))

    def dmaWq(st):
        o = ['s_add_u32 m0, s%d, %d' % (sWl, st * 16384), 's_add_u32 s%d, s%d, %d' % (sT, sD1, st * 64 * 8192)]
        for p in range(4):
            o.append(('buffer_load_dwordx4 v%d, s[%d:%d], s%d offen offset:%d lds' % (vWo[p], WQ, WQ + 3, sT, p * 1024), dict(tok_w=['W%d' % st])))
        return o
    def ldH(st):
        o = []
        for rt in range(2):
            o.append('s_add_u32 s%d, s%d, %d' % (sT2, sD2, rt * 32768 + st * 4096))
            for i in range(4):
                a = ((st * 4 + i) * 2 + rt) * 4
                o.append('buffer_load_dwordx4 a[%d:%d], v%d, s[%d:%d], s%d offen offset:%d' % (a, a + 3, vL16, WS, WS + 3, sT2, i * 1024))
        return o
    def dma4(m0expr, soff, tok):
        o = [m0expr]
        for p in range(4):
            o.append(('buffer_load_dwordx4 v%d, s[%d:%d], s%d offen offset:%d lds' % (vL16, WS, WS + 3, soff, p * 1024), dict(tok_w=[tok])))
        return o
    NPRE = 5
    for st in range(NPRE):
        emit(dmaWq(st)); emit(ldH(st))
    k('v_lshrrev_b32 v4, 5, v%d' % vL)
    k('v_bfe_u32 v5, v%d, 2, 2' % vL)
    k('v_lshl_add_u32 v6, v4, 3, v5')
    k('v_lshlrev_b32 v6, 8, v6')
    k('v_lshl_add_u32 v6, v5, 6, v6')
    k('v_bfe_u32 v7, v%d, 1, 1' % vL)
    k('v_lshl_add_u32 v6, v7, 5, v6')
    k('v_and_b32 v7, 16, v%d' % vL)
    k('v_add_u32 v6, v6, v7')
    k('v_and_b32 v7, 1, v%d' % vL)
    k('v_lshl_add_u32 v%d, v7, 3, v6' % vWr[0])
    for dt in range(1, 4): k('v_xor_b32 v%d, %d, v%d' % (vWr[dt], dt * 64, vWr[0]))
    k('v_bfe_u32 v7, v%d, 4, 1' % vL)
    k('v_lshlrev_b32 v7, 17, v7')
    k('v_lshl_add_u32 v7, v4, 8, v7')
    k('v_lshl_add_u32 v%d, v3, 4, v7' % vCst)
    k('v_and_b32 v7, 31, v%d' % vL)
    k('v_lshlrev_b32 v4, 2, v4')
    k('v_sub_u32 v7, v7, v4')
    for r in range(16):
        j, i = r >> 2, r & 3
        k('v_cmp_gt_i32 s[%d:%d], %d, v7' % (sMask + 2 * r, sMask + 2 * r + 1, 16 * (j & 1) + 8 * (j >> 1) + i))
    k('v_lshlrev_b32 v%d, 7, v%d' % (vPf, vL))
    k('s_mov_b32 s%d, %s' % (sLo, NEG_INF))
    k('s_lshl_b32 s%d, s2, 15' % sQB)
    k('s_add_u32 s%d, s%d, %d' % (sQB, sQB, WS_QB))
    k('s_lshl_b32 s%d, s%d, 12' % (sCtx, sHD))
    k('s_add_u32 s%d, s%d, %d' % (sCtx, sCtx, WS_CTX))

    RING = [SX, SX + 16, T]
    def rdWq(sl):
        o = []
        for dt in range(4):
            for rd in range(2):
                d = RING[sl % 3] + dt * 4 + rd * 2
                o.append('ds_read_b64_tr_b16 v[%d:%d], v%d offset:%d' % (d, d + 1, vWr[dt], ((sl % 16) * 16 + 4 * rd) * 256))
        return o
    k.need('W0')
    k('s_barrier')
    if prof: k(stamp(1)); k('s_waitcnt lgkmcnt(0)')
    emit(rdWq(0)); emit(rdWq(1))
    mf = []
    for sl in range(32):
        for dt in range(4):
            for rt in range(2):
                mf.append(m32(vr((rt * 4 + dt) * 16, 16), vr(RING[sl % 3] + dt * 4, 4), ar((sl * 2 + rt) * 4, 4), '0' if sl == 0 else None))
    S = Stream(mf, 6)
    for sl in range(2, 32):
        if sl == 16:
            for dt in range(4): S.put_alu(14 * 8 - 1, 'v_add_u32 v%d, 0x10000, v%d' % (vWr[dt], vWr[dt]), force=True)
        for i, l in enumerate(rdWq(sl)):
            S.put_mem((sl - 2) * 8 + i, l, force=True)
    def put_after(g, seq):
        for ins in seq:
            S.alu[g].append(ins)
            t = ins[0] if isinstance(ins, tuple) else ins
            if t.startswith('buffer'): g += 2
        return g
    for st in range(8):
        b = st * 32
        if st + 1 < 8:
            S.put_pre(b + 16, NEED('W%d' % (st + 1)))
            S.put_pre(b + 16, 's_barrier')
        if st + NPRE < 8:
            put_after(b + 2, dmaWq(st + NPRE) + ldH(st + NPRE))
        if st == 3:
            put_after(b + 2, dma4('s_add_u32 m0, s%d, %d' % (sWl, 131072), sKVh, 'K0'))
        if st == 4:
            g = put_after(b + 2, ['s_add_u32 s%d, s%d, 16384' % (sT, sKVh)] + dma4('s_mov_b32 m0, s%d' % sWl, sT, 'U'))
            put_after(g, ['s_add_u32 s%d, s%d, 32768' % (sT, sKVh)] + dma4('s_add_u32 m0, s%d, 16384' % sWl, sT, 'U'))
        if st == 6:
            S.put_pre(b + 16, '') if False else None
    S.pre[5 * 32 + 16].insert(0, NEED('K0'))
    S.put_alu(5 * 32, 'v_add_u32 v%d, 0x20000, v%d' % (vR, vL16))
    g = 6 * 32
    for f in range(16):
        S.alu[g].insert(0, 'ds_read_b128 a[%d:%d], v%d offset:%d' % (KF + 4 * f, KF + 4 * f + 3, vR, f * 1024)); g += 2
    J = SY
    sRR, sBI = sV1, sK1
    k('s_mul_i32 s%d, s2, 1490' % sRR)
    k('s_lshr_b32 s%d, s%d, 16' % (sRR, sRR))
    k('s_mul_i32 s%d, s%d, 44' % (sV2, sRR))
    k('s_sub_u32 s%d, s2, s%d' % (sBI, sV2))
    k('s_cmp_ge_u32 s%d, 22' % sBI)
    k('s_cselect_b32 s%d, s68, s%d' % (WF, WF))
    k('s_cselect_b32 s%d, s69, s%d' % (WF + 1, WF + 1))
    k('s_cselect_b32 s%d, 22, 0' % sV2)
    k('s_sub_u32 s%d, s%d, s%d' % (sV2, sBI, sV2))
    k('s_lshl_b32 s%d, s%d, 7' % (sV2, sV2))
    k('s_mul_i32 s%d, s%d, %d' % (sK2, sRR, 128 * 2752))
    k('s_add_u32 s%d, s%d, s%d' % (sV2, sV2, sK2))
    k('s_lshl_b32 s%d, s%d, 9' % (sK2, sRR))
    k('s_add_u32 s%d, s%d, %d' % (sK2, sK2, WS_MOD + 3 * 2048))
    k('v_lshrrev_b32 v%d, 3, v0' % (J + 40))
    k('v_and_b32 v%d, 7, v0' % (J + 41))
    k('v_mul_u32_u24 v%d, 2752, v%d' % (J + 42, J + 40))
    k('v_lshl_add_u32 v%d, v%d, 4, v%d' % (J + 42, J + 41, J + 42))
    k('v_lshlrev_b32 v%d, 2, v%d' % (J + 40, J + 40))
    k('v_lshlrev_b32 v%d, 22, v0' % (J + 43))
    k('v_and_b32 v%d, 0xe0000000, v%d' % (J + 43, J + 43))
    seq = []
    for i in range(4):
        seq.append('buffer_load_dwordx4 v[%d:%d], v%d, s[%d:%d], s%d offen' % (J + 4 * i, J + 4 * i + 3, J + 42, WF, WF + 3, sV2))
        seq.append('s_add_u32 s%d, s%d, %d' % (sV2, sV2, 32 * 2752))
    for i in range(4):
        seq.append('buffer_load_dword v%d, v%d, s[%d:%d], s%d offen offset:%d' % (J + 16 + i, J + 40, WS, WS + 3, sK2, 128 * i))
        seq.append('buffer_load_dword v%d, v%d, s[%d:%d], s%d offen offset:%d' % (J + 20 + i, J + 40, WS, WS + 3, sK2, 2048 + 128 * i))
    put_after(3 * 32 + 11, seq)
    seq = []
    for i in range(4):
        seq += ['v_add_f32 v%d, 1.0, v%d' % (J + 20 + i, J + 20 + i)] + rbf(J + 20 + i, J + 20 + i)
    for i in range(4):
        for j in range(4):
            seq += ['v_lshlrev_b32 v%d, 16, v%d' % (J + 44, J + 4 * i + j), 'v_and_b32 v%d, 0xffff0000, v%d' % (J + 45, J + 4 * i + j)]
            for v in range(2):
                op = 'v_mul_f32' if i == 0 else 'v_fmac_f32'
                wv = J + (20 if v == 0 else 16) + i
                seq += ['%s v%d, v%d, v%d' % (op, J + 24 + 8 * v + 2 * j, J + 44, wv), '%s v%d, v%d, v%d' % (op, J + 25 + 8 * v + 2 * j, J + 45, wv)]
    for v in range(2):
        a = J + 24 + 8 * v
        seq += ['v_permlane32_swap_b32 v%d, v%d' % (a + j, a + 4 + j) for j in range(4)]
        seq += ['v_add_f32 v%d, v%d, v%d' % (a + j, a + j, a + 4 + j) for j in range(4)]
    for v in range(2):
        a = J + 24 + 8 * v
        seq += ['v_permlane16_swap_b32 v%d, v%d' % (a + j, a + 2 + j) for j in range(2)]
    for v in range(2):
        a = J + 24 + 8 * v
        seq += ['v_add_f32 v%d, v%d, v%d' % (a + j, a + j, a + 2 + j) for j in range(2)]
    seq += ['v_lshlrev_b32 v%d, 5, v%d' % (J + 41, J + 41), 'v_lshrrev_b32 v%d, 4, v%d' % (J + 44, vL),
            'v_lshl_add_u32 v%d, v%d, 3, v%d' % (J + 41, J + 44, J + 41), 's_lshl_b32 s%d, s%d, 9' % (sV2, sW),
            's_add_u32 s%d, s%d, %d' % (sV2, sV2, 131072 + 20480), 'v_add_u32 v%d, s%d, v%d' % (J + 41, sV2, J + 41)]
    for v in range(2):
        a = J + 24 + 8 * v
        seq += ['v_add_f32_dpp v%d, v%d, v%d row_ror:8 row_mask:0xf bank_mask:0xf' % (a + j, a + j, a + j) for j in range(2)]
    for v in range(2):
        a = J + 24 + 8 * v
        seq.append(('ds_write_b64 v%d, v[%d:%d] offset:%d' % (J + 41, a, a + 1, 256 * v), dict(tok_w=['utw'])))
    g = 5 * 32 + 2
    for ins in seq: g = S.put_alu(g, ins)
    assert g < 6 * 32 + 14, g
    S.pre[6 * 32 + 16].insert(0, NEED('utw'))
    seq = ['s_lshl_b32 s%d, s%d, 8' % (sV2, sW), 's_and_b32 s%d, s%d, 256' % (sV2, sV2), 's_add_u32 s%d, s%d, %d' % (sV2, sV2, 131072 + 20480),
           'v_lshl_add_u32 v%d, v%d, 2, s%d' % (J + 41, vL, sV2)]
    seq += ['ds_read_b32 v%d, v%d offset:%d' % (J + i, J + 41, 512 * i) for i in range(4)]
    seq += ['s_lshl_b32 s%d, s%d, 1' % (sV2, sRR), 's_add_u32 s%d, s%d, s%d' % (sV2, sV2, sW), 's_mul_i32 s%d, s%d, %d' % (sV2, sV2, 2816 * 4),
            's_lshl_b32 s%d, s%d, 8' % (sK2, sBI), 's_add_u32 s%d, s%d, s%d' % (sV2, sV2, sK2), 's_add_u32 s%d, s%d, %d' % (sV2, sV2, WS_UTP),
            'v_lshl_add_u32 v%d, v%d, 2, v%d' % (J + 43, vL, J + 43)]
    g = 6 * 32 + 17
    for ins in seq: g = S.put_alu(g, ins)
    seq = ['v_add_f32 v%d, v%d, v%d' % (J, J, J + 1), 'v_add_f32 v%d, v%d, v%d' % (J + 2, J + 2, J + 3), 'v_add_f32 v%d, v%d, v%d' % (J, J, J + 2),
           'buffer_store_dword v%d, v%d, s[%d:%d], s%d offen' % (J, J + 43, WS, WS + 3, sV2)]
    g += 4
    for ins in seq: g = S.put_alu(g, ins)
    gfree = g + 1
    g = 24 * 8 + 2
    for r in range(64): g = S.put_alu(g, 'v_accvgpr_write_b32 a%d, 0' % (VF + r))
    g = gfree
    for r in range(32): g = S.put_alu(g, 'v_mov_b32 v%d, 0' % (NMX + r))
    qstream = S

    def qk(Z):
        return [m32(vr(S_[Z] + kt * 16, 16), ar(KF + (kt * 8 + sl) * 4, 4), ar(Q[Z] + sl * 4, 4), vr(NM[Z], 16) if sl == 0 else None)
                for kt in range(2) for sl in range(8)]
    def pv(Z):
        return [m32(vr(O[Z] + dt * 16, 16), ar(VF + (kg * 4 + dt) * 4, 4), vr(S_[Z] + kg * 8, 4)) for kg in range(4) for dt in range(4)]
    def maxops(Z, kt):
        b = S_[Z] + kt * 16; m = vm[Z]
        o = []
        if kt == 0:
            o.append('v_max3_f32 v%d, v%d, v%d, v%d' % (m, b, b + 1, b + 2))
            for r in range(3, 15, 2): o.append('v_max3_f32 v%d, v%d, v%d, v%d' % (m, m, b + r, b + r + 1))
        else:
            o.append('v_max3_f32 v%d, v%d, v%d, v%d' % (m, m, b - 1, b))
            for r in range(1, 15, 2): o.append('v_max3_f32 v%d, v%d, v%d, v%d' % (m, m, b + r, b + r + 1))
            o.append('v_max_f32 v%d, v%d, v%d' % (m, m, b + 15))
        return o
    def softops(Z):
        b = S_[Z]; l = vl[Z]
        out = []
        for e in range(34):
            o = []
            if e < 32: o.append(('exp', e, 'v_exp_f32 v%d, v%d' % (b + e, b + e)))
            if 1 <= e <= 32: o.append(('add', e - 1, 'v_add_f32 v%d, v%d, v%d' % (l, l, b + e - 1)))
            if e >= 2 and e % 2 == 0:
                p = e - 2
                o.append(('cvt', p, 'v_cvt_pk_bf16_f32 v%d, v%d, v%d' % (b + (p // 8) * 8 + (p % 8) // 2, b + p, b + p + 1)))
            out.append(o)
        return out
    def step_dma():
        o = []
        o += dma4('s_mov_b32 m0, s%d' % sM0, sV1, 'Un')
        o += dma4('s_add_u32 m0, s%d, 16384' % sM0, sK1, 'Un')
        o += dma4('s_add_u32 m0, s%d, 65536' % sM0, sV2, 'Un')
        o += dma4('s_add_u32 m0, s%d, 81920' % sM0, sK2, 'Un')
        return o
    def step_scalars():
        return ['s_add_u32 s%d, s%d, 1' % (sJ, sJ),
                's_xor_b32 s%d, s%d, 0x8000' % (sM0, sM0),
                's_lshl_b32 s%d, s%d, 15' % (sT, sJ),
                's_add_u32 s%d, s%d, s%d' % (sV1, sD1, sT),
                's_sub_u32 s%d, s%d, s%d' % (sV2, sD2, sT),
                's_cmp_ge_u32 s%d, s%d' % (sJ, sI),
                's_cselect_b32 s%d, s%d, 0xf0000000' % (sV2, sV2),
                's_cmp_lt_u32 s%d, 16' % sJ,
                's_cselect_b32 s%d, s%d, 0xf0000000' % (sV1, sV1),
                's_cselect_b32 s%d, s%d, 0xf0000000' % (sV2, sV2),
                's_add_u32 s%d, s%d, 16384' % (sK1, sV1),
                's_sub_u32 s%d, s%d, 49152' % (sK2, sV2),
                ]
    L = Stream(qk('X') + pv('Y') + qk('Y') + pv('X'), 6)
    L.put_seq(0, step_dma()[1:])
    for f in range(16):
        L.put_mem(16 + f, 'ds_read_b128 a[%d:%d], v%d offset:%d' % (VF + 4 * f, VF + 4 * f + 3, vR, f * 1024), force=True)
        L.put_mem(32 + f, 'ds_read_b128 a[%d:%d], v%d offset:%d' % (KF + 4 * f, KF + 4 * f + 3, vR, 16384 + f * 1024), force=True)
    CH = 21
    ystate = {}
    ywrap = []
    for Z, base in (('X', 0), ('Y', 32)):
        for e, bundle in enumerate(softops(Z)):
            g = base + CH + e
            for kind, idx, ins in bundle:
                if g >= 64:
                    ywrap.append((g - 64, kind, idx, ins))
                L.put_alu(g % 64, ins, force=True)
    for Z, base in (('X', 0), ('Y', 32)):
        g = base + 10
        for ins in maxops(Z, 0): g = L.put_alu(g, ins)
        g = max(g, base + 18)
        for ins in maxops(Z, 1): g = L.put_alu(g, ins, force=(g >= base + CH - 1))
        assert g <= base + CH - 1, g
        L.put_alu(base + CH - 1, 'v_cmp_lt_f32 vcc, s%d, v%d' % (sThr, vm[Z]), force=True)
        L.put_pre(base + CH, 's_cbranch_vccnz K2_SLOW' + Z)
        L.put_pre(base + CH, 'K2_BACK%s:' % Z)
    g = L.put_seq(55, step_scalars() + ['v_xor_b32 v%d, 0x8000, v%d' % (vR, vR),
                                        's_cmp_eq_u32 s%d, s%d' % (sJ, sDiag),
                                        's_cselect_b32 s%d, s%d, 0x41000000' % (sThr, sLo),
                                        's_mov_b32 s%d, 0' % sFirst])
    print('k2 loop gap costs', L.cost, 'tail', len(L.tail))
    notexp = {idx for (_, kind, idx, _) in ywrap if kind == 'exp'}
    def init_sy():
        return ['v_mov_b32 v%d, %s' % (SY + r, NEG_INF if r in notexp else '0') for r in range(32)]
    g = gfree
    for ins in init_sy(): g = qstream.put_alu(g, ins)
    print('k2 qproj fillers end', g, 'tail', len(qstream.tail))

    qstream.emit(k)
    if prof: k(stamp(2)); k('s_waitcnt lgkmcnt(0)')
    k('s_lshl_b32 s%d, s%d, 14' % (sT, sW))
    k('s_and_b32 s%d, s%d, 0x4000' % (sT, sT))
    k('s_add_u32 s%d, s%d, s%d' % (sT, sT, sQB))
    k('s_cmp_ge_u32 s%d, 2' % sW)
    k('s_cselect_b32 s%d, s%d, 0xf0000000' % (sT, sT))
    n = 0
    for rt in range(2):
        for sl in range(8):
            a = (rt * 4 + (sl >> 1)) * 16 + (sl & 1) * 8
            p = T + (n % 4) * 4
            for i in range(4): k('v_cvt_pk_bf16_f32 v%d, v%d, v%d' % (p + i, a + 2 * i, a + 2 * i + 1))
            for i in range(4): k('v_accvgpr_write_b32 a%d, v%d' % (rt * 32 + sl * 4 + i, p + i))
            k('buffer_store_dwordx4 v[%d:%d], v%d, s[%d:%d], s%d offen offset:%d' % (p, p + 3, vL16, WS, WS + 3, sT, (n % 4) * 1024))
            if n % 4 == 3: k('s_add_u32 s%d, s%d, 4096' % (sT, sT))
            n += 1
        if rt == 0:
            for i in range(4): k('v_accvgpr_write_b32 a%d, 0' % (ZR + i))
        for dt in range(4): k(m32(vr(rt * 64 + dt * 16, 16), ar(ZR, 4), ar(ZR, 4), '0'))
    k('v_mov_b32 v%d, 0' % vlX); k('v_mov_b32 v%d, 0' % vlY)
    k('v_mov_b32 v%d, v%d' % (vR, vL16))
    k('s_add_u32 s%d, s%d, %d' % (sD1, sKVh, 32768 + 16384))
    k('s_add_u32 s%d, s%d, %d' % (sD2, sKVh, 32 * 32768 + 16384))
    k('s_mov_b32 s%d, -1' % sJ)
    k('s_mov_b32 s%d, s%d' % (sM0, sWl))
    emit(step_scalars())
    k('s_mov_b32 s%d, s%d' % (sDiag, sRT))
    k('s_mov_b32 s%d, %s' % (sThr, NEG_INF))
    k('s_mov_b32 s%d, 1' % sFirst)
    k.tokmv('Un', 'U')
    k.need('Un')
    k('s_waitcnt lgkmcnt(0)')
    k('s_branch K2_TOPB')

    k.label('K2_TOP')
    k.need('Un')
    k('s_waitcnt lgkmcnt(0)')
    k.label('K2_TOPB')
    k('s_barrier')
    k(step_dma()[0])
    L.emit(k)
    k('s_cmp_lg_u32 s%d, s%d' % (sJ, sN1))
    k('s_cbranch_scc1 K2_TOP')

    def drain(extra_mem):
        rest = [ins for (_, _, _, ins) in ywrap]
        D = Stream(pv('Y'), 6)
        need = {}
        for n_, (_, kind, idx, _) in enumerate(ywrap):
            if kind == 'cvt': need[idx // 8] = n_
        pos = 0
        first = need.get(0, -1) + 1
        head = rest[:first]; pos = first
        g = 0
        for kg in range(1, 4):
            upto = need.get(kg, -1) + 1
            ops = rest[pos:upto]
            lo, hi = 4 * (kg - 1), 4 * kg - 2
            per = -(-len(ops) // (hi - lo + 1)) if ops else 0
            for n_, ins in enumerate(ops): D.put_alu(lo + n_ // per, ins, force=True)
            pos = max(pos, upto)
        for ins in rest[pos:]: D.put_alu(12, ins, force=True)
        emit(extra_mem)
        emit(head)
        D.emit(k)

    def finish_l(Z, t):
        return ['v_mov_b32 v%d, v%d' % (t, vl[Z]), 'v_permlane32_swap_b32 v%d, v%d' % (t, vl[Z]),
                'v_add_f32 v%d, v%d, v%d' % (t, t, vl[Z]), 'v_rcp_f32 v%d, v%d' % (t, t)]
    def store_ctx(Z, src, soff, n0=0):
        n = n0
        for dt in range(4):
            for s in range(2):
                a = O[Z] + dt * 16 + s * 8
                p = T + (n % 3) * 4; n += 1
                for i in range(8): emit(src(dt * 16 + s * 8 + i))
                for i in range(4): k('v_cvt_pk_bf16_f32 v%d, v%d, v%d' % (p + i, a + 2 * i, a + 2 * i + 1))
                k('buffer_store_dwordx4 v[%d:%d], v%d, s[%d:%d], s%d offen offset:%d sc1' % (p, p + 3, vCst, WS, WS + 3, soff, dt * 1024 + s * 512))

    k('s_cmp_eq_u32 s%d, 17' % sJ)
    k('s_cbranch_scc1 K2_FINAL')
    k.need('Un')
    k('s_waitcnt lgkmcnt(0)')
    k('s_barrier')
    pre = step_dma()
    pre += ['s_xor_b32 s%d, s%d, 1' % (sT2, sW), 's_lshl_b32 s%d, s%d, 14' % (sT2, sT2), 's_add_u32 s%d, s%d, s%d' % (sT2, sT2, sQB)]
    for f in range(16):
        pre.append(('buffer_load_dwordx4 a[%d:%d], v%d, s[%d:%d], s%d offen offset:%d' % (4 * f, 4 * f + 3, vL16, WS, WS + 3, sT2, (f % 4) * 1024), dict(tok_w=['Qr'])))
        if f % 4 == 3: pre.append('s_add_u32 s%d, s%d, 4096' % (sT2, sT2))
    pre.append('v_or_b32 v%d, 0x10000, v%d' % (vR, vR))
    for f in range(16):
        pre.append('ds_read_b128 a[%d:%d], v%d offset:%d' % (KF + 4 * f, KF + 4 * f + 3, vR, 16384 + f * 1024))
    pre += ['s_xor_b32 s%d, s%d, 3' % (sT2, sW), 's_lshl_b32 s%d, s%d, 9' % (sT2, sT2), 's_add_u32 s%d, s%d, %d' % (sT2, sT2, 131072 + 16384),
            'v_lshrrev_b32 v%d, 1, v%d' % (vmX, vL16), 'v_add_u32 v%d, s%d, v%d' % (vmX, sT2, vmX),
            'ds_read_b64 v[%d:%d], v%d' % (vmX, vmY, vmX)]
    drain(pre)
    k('s_lshl_b32 s%d, s%d, 19' % (sT2, sRT))
    k('s_add_u32 s%d, s%d, s%d' % (sT2, sT2, sCtx))
    for Z in 'XY':
        emit(finish_l(Z, T + 12))
        store_ctx(Z, lambda r, Z=Z: ['v_mul_f32 v%d, v%d, v%d' % (O[Z] + r, O[Z] + r, T + 12)], sT2)
        if Z == 'X': k('s_add_u32 s%d, s%d, %d' % (sT2, sT2, 2 * 131072))
        for dt in range(4): k(m32(vr(O[Z] + dt * 16, 16), ar(ZR, 4), ar(ZR, 4), '0'))
        for r in range(16): k('v_mov_b32 v%d, v%d' % (NM[Z] + r, vm[Z]))
        k('v_mov_b32 v%d, 0' % vl[Z])
    emit(init_sy())
    emit(step_scalars())
    k('v_xor_b32 v%d, 0x8000, v%d' % (vR, vR))
    k('s_sub_u32 s%d, 31, s%d' % (sRT, sRT))
    k('s_mov_b32 s%d, s%d' % (sDiag, sJ))
    k('s_mov_b32 s%d, %s' % (sThr, NEG_INF))
    k('s_mov_b32 s%d, 17' % sN1)
    k('s_cmp_eq_u32 s%d, 17' % sJ)
    k('s_cbranch_scc1 K2_MERGE')
    k.need('Un', 'Qr')
    k('s_waitcnt lgkmcnt(0)')
    k('s_branch K2_TOPB')

    for Z in 'XY':
        b = S_[Z]; m = vm[Z]
        k.label('K2_SLOW' + Z)
        k('s_cmp_lg_u32 s%d, s%d' % (sJ, sDiag))
        k('s_cbranch_scc1 K2_NODIAG' + Z)
        k('v_mov_b32 v%d, %s' % (T, NEG_INF))
        tri = b if Z == 'X' else b + 16
        for r in range(16):
            k('v_cndmask_b32 v%d, v%d, v%d, s[%d:%d]' % (tri + r, tri + r, T, sMask + 2 * r, sMask + 2 * r + 1))
        if Z == 'X':
            for r in range(16): k('v_mov_b32 v%d, v%d' % (b + 16 + r, T))
        k('v_cmp_lt_f32 vcc, 0x41000000, v%d' % m)
        k('s_or_b32 s%d, vcc_lo, vcc_hi' % sT2)
        k('s_or_b32 s%d, s%d, s%d' % (sT2, sT2, sFirst))
        k('s_cbranch_scc0 K2_BACK' + Z)
        for ins in maxops(Z, 0) + maxops(Z, 1): k(ins)
        k.label('K2_NODIAG' + Z)
        k('v_mov_b32 v%d, v%d' % (T, m))
        k('v_permlane32_swap_b32 v%d, v%d' % (T, m))
        k('v_max_f32 v%d, v%d, v%d' % (m, m, T))
        k('s_cmp_lg_u32 s%d, 0' % sFirst)
        k('s_cbranch_scc1 K2_FIRST' + Z)
        k('v_max_f32 v%d, 0, v%d' % (m, m))
        k('v_sub_f32 v%d, 0, v%d' % (T, m))
        k('v_exp_f32 v%d, v%d' % (T, T))
        k('v_mul_f32 v%d, v%d, v%d' % (vl[Z], vl[Z], T))
        for r in range(64): k('v_mul_f32 v%d, v%d, v%d' % (O[Z] + r, O[Z] + r, T))
        k.label('K2_FIRST' + Z)
        for r in range(32): k('v_sub_f32 v%d, v%d, v%d' % (b + r, b + r, m))
        for r in range(16): k('v_sub_f32 v%d, v%d, v%d' % (NM[Z] + r, NM[Z] + r, m))
        k('s_cmp_eq_u32 s%d, 0' % sFirst)
        k('s_cbranch_scc1 K2_BACK' + Z)
        k('v_lshrrev_b32 v%d, 1, v%d' % (T, vL16))
        k('s_lshl_b32 s%d, s%d, 9' % (sT2, sW))
        k('s_add_u32 s%d, s%d, %d' % (sT2, sT2, 131072 + 16384 + (4 if Z == 'Y' else 0)))
        k('v_add_u32 v%d, s%d, v%d' % (T, sT2, T))
        k('ds_write_b32 v%d, v%d' % (T, NM[Z]))
        k('s_waitcnt lgkmcnt(0)')
        k('s_branch K2_BACK' + Z)

    k.label('K2_FINAL')
    if prof: k(stamp(3)); k('s_waitcnt lgkmcnt(0)')
    drain([])
    k.label('K2_MERGE')
    k('s_waitcnt vmcnt(0) lgkmcnt(0)')
    k('s_barrier')
    k('s_mul_i32 s%d, s%d, 20480' % (sT, sW))
    k('v_add_u32 v%d, s%d, v%d' % (vR, sT, vL16))
    k('s_sub_u32 s%d, %d, s%d' % (sT, 3 * 20480, sT))
    k('v_add_u32 v%d, s%d, v%d' % (vPf, sT, vL16))
    k('s_lshl_b32 s%d, s%d, 19' % (sT2, sRT))
    k('s_add_u32 s%d, s%d, s%d' % (sT2, sT2, sCtx))
    k('s_cmp_ge_u32 s%d, 2' % sW)
    k('s_cbranch_scc1 K2_M23')
    for send, keep in (('X', 'Y'), ('Y', 'X')):
        if send == 'Y': k.label('K2_M23')
        for f in range(16):
            k('ds_write_b128 v%d, v[%d:%d] offset:%d' % (vR, O[send] + 4 * f, O[send] + 4 * f + 3, f * 1024))
        k('v_mov_b32 v%d, v%d' % (NM[send] + 1, vl[send]))
        k('ds_write_b64 v%d, v[%d:%d] offset:16384' % (vR, NM[send], NM[send] + 1))
        k('s_waitcnt lgkmcnt(0)')
        k('s_barrier')
        k('ds_read_b64 v[%d:%d], v%d offset:16384' % (T, T + 1, vPf))
        for f in range(16):
            k('ds_read_b128 v[%d:%d], v%d offset:%d' % (O[send] + 4 * f, O[send] + 4 * f + 3, vPf, f * 1024))
        nm = NM[keep]
        k('v_min_f32 v%d, v%d, v%d' % (T + 2, nm, T))
        k('v_sub_f32 v%d, v%d, v%d' % (T + 13, T + 2, nm))
        k('v_sub_f32 v%d, v%d, v%d' % (T + 14, T + 2, T))
        k('v_exp_f32 v%d, v%d' % (T + 13, T + 13))
        k('v_exp_f32 v%d, v%d' % (T + 14, T + 14))
        k('v_mul_f32 v%d, v%d, v%d' % (vl[keep], vl[keep], T + 13))
        k('v_fmac_f32 v%d, v%d, v%d' % (vl[keep], T + 1, T + 14))
        emit(finish_l(keep, T + 12))
        k('v_mul_f32 v%d, v%d, v%d' % (T + 13, T + 13, T + 12))
        k('v_mul_f32 v%d, v%d, v%d' % (T + 14, T + 14, T + 12))
        if keep == 'Y': k('s_add_u32 s%d, s%d, %d' % (sT2, sT2, 2 * 131072))
        store_ctx(keep, lambda r, keep=keep, send=send: ['v_mul_f32 v%d, v%d, v%d' % (O[keep] + r, O[keep] + r, T + 13),
                                                         'v_fmac_f32 v%d, v%d, v%d' % (O[keep] + r, O[send] + r, T + 14)], sT2)
        if send == 'X': k('s_branch K2_DONE')
    k.label('K2_DONE')
    if prof: prof_end(k, 1, 5, WS, sW, 0)
    k.label('K2_END')
    k('s_endpgm')
    k.finalize()
    return k

if __name__ == '__main__':
    from k1 import gen_k1
    k1 = gen_k1(True)
    k = gen_k2(True)
    print(k.maxregs(), len(k.code), 'nops', k.nops_inserted)
    open('t_k2.s', 'w').write(build_file('; t', [(k1.name, 256, 256, 163840), (k.name, 256, 256, 163840)], [k1, k]))
```

```python
from common import *

ACT_KB = 45

def gen_k35(which, prof=False, li=2):
    name = 'oproj_kernel' if which == 3 else 'down_kernel'
    P = 'K%d_' % which
    k = Kernel(name)
    k('s_cmp_ge_u32 s2, 256')
    k('s_cbranch_scc1 %sEND' % P)
    if prof: k(stamp(0))
    W, WS, X = 4, 8, 12
    load_srds(k, [('wo' if which == 3 else 'wd', W), ('ws', WS), ('x' if which == 3 else 'out', X)])
    sW, sRB, sCB, sT, sT2, sWg, sLb, sRow = range(16, 24)
    sA = [24, 25, 26, 27]
    NS = 32 if which == 3 else 11
    KB = 128 if which == 3 else ACT_KB
    ABASE = WS_CTX if which == 3 else WS_ACT
    D = 8
    ACC, BF, AF = 0, 64, 128
    vBo = [96, 97, 98, 99]; vBr = [100, 101, 102, 103]; vL, vL16, vE = 104, 105, 106
    E = 108
    def emit(seq):
        for i in seq:
            if isinstance(i, tuple):
                if i[0] == '': k.code.append(Ins('', **i[1]))
                else: k(i[0], **i[1])
            else: k(i)
    k('v_lshrrev_b32 v1, 6, v0')
    k('v_and_b32 v%d, 63, v0' % vL)
    k('v_readfirstlane_b32 s%d, v1' % sW)
    k('v_lshlrev_b32 v%d, 4, v%d' % (vL16, vL))
    k('s_and_b32 s%d, s2, 7' % sRB)
    k('s_lshl_b32 s%d, s%d, 2' % (sRB, sRB))
    k('s_lshr_b32 s%d, s2, 6' % sT)
    k('s_add_u32 s%d, s%d, s%d' % (sRB, sRB, sT))
    k('s_bfe_u32 s%d, s2, 0x30003' % sCB)
    k('s_mul_i32 s%d, s%d, %d' % (sT, sRB, 4 * KB * 1024))
    k('s_mul_i32 s%d, s%d, %d' % (sT2, sW, NS * 1024))
    k('s_add_u32 s%d, s%d, s%d' % (sT, sT, sT2))
    for rt in range(4): k('s_add_u32 s%d, s%d, %d' % (sA[rt], sT, ABASE + rt * KB * 1024))
    k('s_mul_i32 s%d, s%d, %d' % (sWg, sW, NS * 32 * 1024))
    k('s_lshl_b32 s%d, s%d, 7' % (sT, sCB))
    k('s_add_u32 s%d, s%d, s%d' % (sWg, sWg, sT))
    k('s_lshl_b32 s%d, s%d, 15' % (sLb, sW))
    k('v_lshrrev_b32 v2, 3, v%d' % vL)
    k('v_and_b32 v3, 6, v2')
    k('v_and_b32 v4, 7, v%d' % vL)
    k('v_xor_b32 v3, v3, v4')
    k('v_lshlrev_b32 v2, 10, v2')
    k('v_lshl_add_u32 v%d, v3, 4, v2' % vBo[0])
    for p in range(1, 4): k('v_add_u32 v%d, %d, v%d' % (vBo[p], p * 7 * 1024, vBo[0]))

    def loads(t):
        o = ['s_add_u32 m0, s%d, %d' % (sLb, (t % D) * 4096), 's_add_u32 s%d, s%d, %d' % (sT, sWg, t * 32768)]
        if t and t % 4 == 0:
            o += ['s_add_u32 s%d, s%d, 4096' % (sA[rt], sA[rt]) for rt in range(4)]
        if which == 5 and t == NS - 1:
            o += ['s_cmp_eq_u32 s%d, 3' % sW] + ['s_cselect_b32 s%d, 0xf0000000, s%d' % (sA[rt], sA[rt]) for rt in range(4)]
        for p in range(4):
            o.append(('buffer_load_dwordx4 v%d, s[%d:%d], s%d offen offset:%d lds' % (vBo[p], W, W + 3, sT, p * 1024), dict(tok_w=['B%d' % t])))
        for rt in range(4):
            a = AF + (t % D) * 16 + rt * 4
            o.append('buffer_load_dwordx4 v[%d:%d], v%d, s[%d:%d], s%d offen offset:%d' % (a, a + 3, vL16, WS, WS + 3, sA[rt], (t % 4) * 1024))
        return o
    for t in range(D - 1): emit(loads(t))
    k('v_lshrrev_b32 v2, 5, v%d' % vL)
    k('v_bfe_u32 v3, v%d, 2, 3' % vL)
    k('v_lshl_add_u32 v2, v2, 4, v3')
    k('v_lshlrev_b32 v2, 7, v2')
    k('v_bfe_u32 v3, v%d, 3, 2' % vL)
    k('v_lshl_add_u32 v2, v3, 5, v2')
    k('v_and_b32 v3, 3, v%d' % vL)
    k('v_lshl_add_u32 v2, v3, 3, v2')
    k('v_add_u32 v%d, s%d, v2' % (vBr[0], sLb))
    for ct in range(1, 4): k('v_xor_b32 v%d, %d, v%d' % (vBr[ct], ct * 32, vBr[0]))

    def rdB(t):
        return ['ds_read_b64_tr_b16 v[%d:%d], v%d offset:%d' % (BF + (t % 2) * 16 + ct * 4 + rd * 2, BF + (t % 2) * 16 + ct * 4 + rd * 2 + 1,
                                                              vBr[ct], (t % D) * 4096 + rd * 1024) for ct in range(4) for rd in range(2)]
    if which == 3:
        k('s_cmp_ge_u32 s2, 11')
        k('s_cbranch_scc1 K3_NOUT')
        k('s_lshl_b32 s%d, s2, 10' % sT2)
        k('v_lshl_add_u32 v2, v0, 2, s%d' % sT2)
        for pt in range(4):
            for v in range(2):
                k('s_mov_b32 s%d, %d' % (sT2, WS_UTP + (pt * 2 + v) * 2816 * 4))
                k('buffer_load_dword v%d, v2, s[%d:%d], s%d offen' % (8 + pt * 2 + v, WS, WS + 3, sT2))
        for v in range(2):
            k('v_add_f32 v%d, v%d, v%d' % (8 + v, 8 + v, 10 + v))
            k('v_add_f32 v%d, v%d, v%d' % (12 + v, 12 + v, 14 + v))
            k('v_add_f32 v%d, v%d, v%d' % (8 + v, 8 + v, 12 + v))
            for l in rbf(20, 8 + v): k(l)
            k('v_sub_f32 v21, v%d, v20' % (8 + v))
            k('v_cvt_pk_bf16_f32 v%d, v20, v21' % (16 + v))
        k('v_lshlrev_b32 v2, 1, v2')
        k('s_mov_b32 s%d, %d' % (sT2, WS_UT))
        k('buffer_store_dwordx2 v[16:17], v2, s[%d:%d], s%d offen' % (WS, WS + 3, sT2))
        k.label('K3_NOUT')
    k.need('B0')
    if prof: k(stamp(1)); k('s_waitcnt lgkmcnt(0)')
    emit(rdB(0))
    mf = []
    for t in range(NS):
        for ct in range(4):
            for rt in range(4):
                mf.append(m16(vr(ACC + (rt * 4 + ct) * 4, 4), vr(BF + (t % 2) * 16 + ct * 4, 4), vr(AF + (t % D) * 16 + rt * 4, 4), '0' if t == 0 else None))
    S = Stream(mf, 3)
    for t in range(NS):
        b = t * 16
        if t + 1 < NS:
            S.put_pre(b, NEED('B%d' % (t + 1)))
            for i, l in enumerate(rdB(t + 1)): S.put_mem(b + i, l, force=True)
        if t + D - 1 < NS:
            g = S.put_seq(b + 2, loads(t + D - 1))
            assert g < b + 16, (g, b)
    seq = ['s_lshl_b32 s%d, s%d, 2' % (sRow, sRB), 's_add_u32 s%d, s%d, s%d' % (sRow, sRow, sW),
           'v_lshrrev_b32 v%d, 2, v%d' % (vE, vL), 'v_lshlrev_b32 v%d, 10, v%d' % (vE, vE), 'v_and_b32 v%d, 3, v%d' % (vE + 1, vL),
           'v_lshl_add_u32 v%d, v%d, 5, v%d' % (vE, vE + 1, vE),
           'v_lshlrev_b32 v%d, 6, v%d' % (vE + 1, vE + 1),
           's_lshl_b32 s%d, s%d, 14' % (sA[0], sRow), 's_lshl_b32 s%d, s%d, 7' % (sA[1], sCB), 's_add_u32 s%d, s%d, s%d' % (sA[0], sA[0], sA[1]),
           's_add_u32 s%d, s%d, %d' % (sA[2], sA[0], WS_X1),
           's_lshl_b32 s%d, s%d, 8' % (sA[1], sCB), 's_add_u32 s%d, s%d, %d' % (sA[1], sA[1], WS_MOD + (2 if which == 3 else 5) * 2048)]
    if which == 3:
        seq += ['buffer_load_dwordx4 a[%d:%d], v%d, s[%d:%d], s%d offen offset:%d' % (4 * h, 4 * h + 3, vE, X, X + 3, sA[0], 16 * h) for h in range(2)]
    else:
        seq += ['buffer_load_dwordx4 a[%d:%d], v%d, s[%d:%d], s%d offen offset:%d' % (4 * h, 4 * h + 3, vE, WS, WS + 3, sA[2], 16 * h) for h in range(2)]
    seq += ['buffer_load_dwordx4 a[%d:%d], v%d, s[%d:%d], s%d offen offset:%d' % (8 + 4 * h, 11 + 4 * h, vE + 1, WS, WS + 3, sA[1], 16 * h) for h in range(4)]
    if which == 3:
        seq += ['s_add_u32 s%d, s%d, 4096' % (sA[1], sA[1])]
        seq += ['buffer_load_dwordx4 a[%d:%d], v%d, s[%d:%d], s%d offen offset:%d' % (24 + 4 * h, 27 + 4 * h, vE + 1, WS, WS + 3, sA[1], 16 * h) for h in range(4)]
    S.put_seq((NS - D + 1) * 16 + 8, seq)
    S.emit(k)
    if prof: k(stamp(2)); k('s_waitcnt lgkmcnt(0)')
    k('v_and_b32 v64, 15, v%d' % vL)
    k('v_mul_u32_u24 v64, 272, v64')
    k('v_lshrrev_b32 v65, 4, v%d' % vL)
    k('v_lshl_add_u32 v64, v65, 4, v64')
    k('v_add_u32 v64, s%d, v64' % sLb)
    for rt in range(4):
        for ct in range(4):
            a = ACC + (rt * 4 + ct) * 4
            k('ds_write_b128 v64, v[%d:%d] offset:%d' % (a, a + 3, rt * 16 * 272 + ct * 64))
    k('v_lshrrev_b32 v65, 2, v%d' % vL)
    k('v_mul_u32_u24 v65, 272, v65')
    k('v_add_u32 v65, v65, v%d' % (vE + 1))
    k('s_mul_i32 s%d, s%d, %d' % (sT, sW, 16 * 272))
    k('v_add_u32 v65, s%d, v65' % sT)
    k('v_add_u32 v66, 0x10000, v65')
    for i in range(40 if which == 3 else 24): k('v_accvgpr_read_b32 v%d, a%d' % (128 + i, i))
    k('s_waitcnt lgkmcnt(0)')
    k('s_barrier')
    for w in range(4):
        for h in range(4):
            k('ds_read_b128 v[%d:%d], v%d offset:%d' % (w * 16 + h * 4, w * 16 + h * 4 + 3, 65 + (w >> 1), (w & 1) * 32768 + h * 16))
    XR, G, C1 = 128, 136, 152
    for j in range(8):
        k('v_lshlrev_b32 v%d, 16, v%d' % (176 + 2 * j, XR + j))
        k('v_and_b32 v%d, 0xffff0000, v%d' % (177 + 2 * j, XR + j))
    if which == 3:
        for i in range(0, 16, 2):
            k('v_add_f32 v%d, 1.0, v%d' % (C1 + i, C1 + i)); k('v_add_f32 v%d, 1.0, v%d' % (C1 + i + 1, C1 + i + 1))
            k('v_cvt_pk_bf16_f32 v70, v%d, v%d' % (C1 + i, C1 + i + 1))
            k('v_lshlrev_b32 v%d, 16, v70' % (C1 + i)); k('v_and_b32 v%d, 0xffff0000, v70' % (C1 + i + 1))
    for i in range(16):
        k('v_add_f32 v%d, v%d, v%d' % (i, i, 16 + i))
        k('v_add_f32 v%d, v%d, v%d' % (32 + i, 32 + i, 48 + i))
    for i in range(16): k('v_add_f32 v%d, v%d, v%d' % (i, i, 32 + i))
    for i in range(0, 16, 2):
        k('v_cvt_pk_bf16_f32 v70, v%d, v%d' % (i, i + 1))
        k('v_lshlrev_b32 v%d, 16, v70' % i); k('v_and_b32 v%d, 0xffff0000, v70' % (i + 1))
        k('v_mul_f32 v%d, v%d, v%d' % (i, i, G + i)); k('v_mul_f32 v%d, v%d, v%d' % (i + 1, i + 1, G + i + 1))
        k('v_cvt_pk_bf16_f32 v70, v%d, v%d' % (i, i + 1))
        k('v_lshlrev_b32 v%d, 16, v70' % i); k('v_and_b32 v%d, 0xffff0000, v70' % (i + 1))
        k('v_add_f32 v%d, v%d, v%d' % (i, i, 176 + i)); k('v_add_f32 v%d, v%d, v%d' % (i + 1, i + 1, 177 + i))
        k('v_cvt_pk_bf16_f32 v%d, v%d, v%d' % (72 + i // 2, i, i + 1))
    if which == 5:
        for h in range(2):
            k('buffer_store_dwordx4 v[%d:%d], v%d, s[%d:%d], s%d offen offset:%d' % (72 + 4 * h, 75 + 4 * h, vE, X, X + 3, sA[0], 16 * h))
    else:
        for h in range(2):
            k('buffer_store_dwordx4 v[%d:%d], v%d, s[%d:%d], s%d offen offset:%d' % (72 + 4 * h, 75 + 4 * h, vE, WS, WS + 3, sA[2], 16 * h))
        for j in range(8):
            k('v_lshlrev_b32 v%d, 16, v%d' % (2 * j, 72 + j)); k('v_and_b32 v%d, 0xffff0000, v%d' % (2 * j + 1, 72 + j))
        for j in range(8):
            k('v_mul_f32 v16, v%d, v%d' % (2 * j, C1 + 2 * j)); k('v_mul_f32 v17, v%d, v%d' % (2 * j + 1, C1 + 2 * j + 1))
            k('v_cvt_pk_bf16_f32 v%d, v16, v17' % (80 + j))
        k('v_lshrrev_b32 v18, 2, v%d' % vL)
        k('v_lshlrev_b32 v19, 4, v%d' % (vE + 1))
        k('v_lshl_add_u32 v19, v18, 4, v19')
        k('s_lshr_b32 s%d, s%d, 1' % (sT, sRow))
        k('s_lshl_b32 s%d, s%d, 15' % (sT, sT))
        k('s_and_b32 s%d, s%d, 1' % (sT2, sRow))
        k('s_lshl_b32 s%d, s%d, 8' % (sT2, sT2))
        k('s_add_u32 s%d, s%d, s%d' % (sT, sT, sT2))
        k('s_lshl_b32 s%d, s%d, 12' % (sT2, sCB))
        k('s_add_u32 s%d, s%d, s%d' % (sT, sT, sT2))
        k('s_add_u32 s%d, s%d, %d' % (sT, sT, WS_Y))
        for h in range(2):
            k('buffer_store_dwordx4 v[%d:%d], v19, s[%d:%d], s%d offen offset:%d' % (80 + 4 * h, 83 + 4 * h, WS, WS + 3, sT, 512 * h))
        k('v_add_f32 v20, v0, v1')
        for i in range(2, 16): k('v_add_f32 v20, v20, v%d' % i)
        k('v_add_f32_dpp v20, v20, v20 quad_perm:[1,0,3,2] row_mask:0xf bank_mask:0xf')
        k('v_add_f32_dpp v20, v20, v20 quad_perm:[2,3,0,1] row_mask:0xf bank_mask:0xf')
        k('v_mul_f32 v22, 0x3c800000, v20')
        for i in range(16):
            k('v_sub_f32 v23, v%d, v22' % i)
            k('v_mul_f32 v21, v23, v23' if i == 0 else 'v_fmac_f32 v21, v23, v23')
        k('v_add_f32_dpp v21, v21, v21 quad_perm:[1,0,3,2] row_mask:0xf bank_mask:0xf')
        k('v_add_f32_dpp v21, v21, v21 quad_perm:[2,3,0,1] row_mask:0xf bank_mask:0xf')
        k('v_lshlrev_b32 v18, 6, v18')
        k('s_lshl_b32 s%d, s%d, 10' % (sT, sRow))
        k('s_lshl_b32 s%d, s%d, 3' % (sT2, sCB))
        k('s_add_u32 s%d, s%d, s%d' % (sT, sT, sT2))
        k('s_add_u32 s%d, s%d, %d' % (sT, sT, WS_STAT))
        k('buffer_store_dwordx2 v[20:21], v18, s[%d:%d], s%d offen' % (WS, WS + 3, sT))
    if prof: prof_end(k, li, 4, WS, sW, 0)
    k.label(P + 'END')
    k('s_endpgm')
    k.finalize()
    return k
```

```python
from common import *
from k35 import ACT_KB
import math, struct
def fbits(x): return '0x%08x' % struct.unpack('<I', struct.pack('<f', x))[0]

def gen_k4(prof=False, li=3):
    k = Kernel('ffn_kernel')
    k('s_cmp_ge_u32 s2, 240')
    k('s_cbranch_scc1 K4_END')
    if prof: k(stamp(0))
    WG, WU, WS = 4, 8, 12
    load_srds(k, [('wg', WG), ('wu', WU), ('ws', WS)])
    sW, sRT, sCB, sT, sT2, sWg, sWl, sY, sAct, sC0, sC1 = range(16, 27)
    ACC, WR, UT, ST, E = 0, 96, 128, 152, 184
    vWo = [168, 169]; vWr = [170, 171, 172]; vL, vL16, vAst = 173, 174, 175
    vDen, vRstd = 176, 177
    BS = 180
    def emit(seq):
        for i in seq:
            if isinstance(i, tuple):
                if i[0] == '': k.code.append(Ins('', **i[1]))
                else: k(i[0], **i[1])
            else: k(i)
    k('v_lshrrev_b32 v1, 6, v0')
    k('v_and_b32 v%d, 63, v0' % vL)
    k('v_readfirstlane_b32 s%d, v1' % sW)
    k('v_lshlrev_b32 v%d, 4, v%d' % (vL16, vL))
    k('s_and_b32 s%d, s2, 7' % sRT)
    k('s_lshl_b32 s%d, s%d, 3' % (sRT, sRT))
    k('s_add_u32 s%d, s%d, s%d' % (sRT, sRT, sW))
    k('s_lshr_b32 s%d, s2, 3' % sCB)
    k('s_cmp_ge_u32 s%d, 15' % sCB)
    k('s_cselect_b32 s%d, 4, 0' % sT)
    k('s_cselect_b32 s%d, 15, 0' % sT2)
    k('s_add_u32 s%d, s%d, s%d' % (sRT, sRT, sT))
    k('s_sub_u32 s%d, s%d, s%d' % (sCB, sCB, sT2))
    k('s_lshl_b32 s%d, s%d, 15' % (sY, sRT))
    k('s_add_u32 s%d, s%d, %d' % (sY, sY, WS_Y))
    k('s_mul_i32 s%d, s%d, %d' % (sWg, sW, 32 * 2752))
    k('s_mul_i32 s%d, s%d, 192' % (sT, sCB))
    k('s_add_u32 s%d, s%d, s%d' % (sWg, sWg, sT))
    k('s_lshl_b32 s%d, s%d, 11' % (sWl, sW))
    k('v_lshrrev_b32 v2, 2, v%d' % vL)
    k('v_mul_u32_u24 v2, 2752, v2')
    k('v_and_b32 v3, 3, v%d' % vL)
    k('v_lshl_add_u32 v%d, v3, 4, v2' % vWo[0])
    k('v_add_u32 v%d, %d, v%d' % (vWo[1], 16 * 2752 - 1024, vWo[0]))
    def dmaW(t):
        c, q = t // 4, t % 4
        o = ['s_add_u32 s%d, s%d, %d' % (sT, sWg, q * 128 * 2752 + c * 64)]
        for m, srd in enumerate((WG, WU)):
            o.append('s_add_u32 m0, s%d, %d' % (sWl, (t % 10) * 16384 + m * 8192))
            for p in range(2):
                o.append(('buffer_load_dwordx4 v%d, s[%d:%d], s%d offen offset:%d lds' % (vWo[p], srd, srd + 3, sT, p * 1024), dict(tok_w=['W%d' % t])))
        return o
    def ldY(q):
        o = []
        for h in range(2):
            o.append('s_add_u32 s%d, s%d, %d' % (sT2, sY, q * 8192 + h * 4096))
            for i in range(4):
                a = (q * 8 + h * 4 + i) * 4
                o.append('buffer_load_dwordx4 a[%d:%d], v%d, s[%d:%d], s%d offen offset:%d' % (a, a + 3, vL16, WS, WS + 3, sT2, i * 1024))
        return o
    for q in range(4):
        emit(dmaW(q)); emit(ldY(q))
    k('v_and_b32 v4, 31, v%d' % vL)
    k('v_lshlrev_b32 v5, 6, v4')
    k('s_lshl_b32 s%d, s%d, 11' % (sT, sRT))
    k('s_add_u32 s%d, s%d, %d' % (sT, sT, WS_STAT))
    for i in range(4): k('buffer_load_dwordx4 v[%d:%d], v5, s[%d:%d], s%d offen offset:%d' % (ST + 4 * i, ST + 4 * i + 3, WS, WS + 3, sT, 16 * i))
    k('v_lshlrev_b32 v5, 3, v4')
    k('s_mul_i32 s%d, s%d, 768' % (sT, sCB))
    for m in range(2):
        k('s_add_u32 s%d, s%d, %d' % (sT2, sT, WS_UT + m * 1408 * 8))
        for c in range(3):
            d = UT + (c * 2 + m) * 4
            k('buffer_load_dwordx2 v[%d:%d], v5, s[%d:%d], s%d offen offset:%d' % (d, d + 1, WS, WS + 3, sT2, c * 256))
            k('v_mov_b32 v%d, 0' % (d + 2)); k('v_mov_b32 v%d, 0' % (d + 3))
    k('v_lshrrev_b32 v6, 5, v%d' % vL)
    k('v_bfe_u32 v7, v%d, 2, 2' % vL)
    k('v_lshl_add_u32 v7, v6, 3, v7')
    k('v_lshlrev_b32 v7, 6, v7')
    k('v_bfe_u32 v8, v%d, 4, 1' % vL)
    k('v_lshl_add_u32 v7, v8, 5, v7')
    k('v_lshl_add_u32 v%d, v3, 3, v7' % vWr[0])
    k('v_add_u32 v%d, 0x10000, v%d' % (vWr[1], vWr[0]))
    k('v_add_u32 v%d, 0x20000, v%d' % (vWr[2], vWr[0]))
    k('v_mul_u32_u24 v8, %d, v8' % (ACT_KB * 1024))
    k('v_lshl_add_u32 v8, v6, 8, v8')
    k('v_and_b32 v9, 15, v%d' % vL)
    k('v_lshl_add_u32 v%d, v9, 4, v8' % vAst)
    k('s_mul_i32 s%d, s%d, %d' % (sAct, sRT, 2 * ACT_KB * 1024))
    k('s_mul_i32 s%d, s%d, 3072' % (sT, sCB))
    k('s_add_u32 s%d, s%d, s%d' % (sAct, sAct, sT))
    k('s_add_u32 s%d, s%d, %d' % (sAct, sAct, WS_ACT))
    a0 = -2 * math.sqrt(2 / math.pi) * math.log2(math.e)
    k('s_mov_b32 s%d, %s' % (sC1, fbits(a0 * 0.044715)))
    k('v_mov_b32 v%d, %s' % (178, fbits(a0)))

    def rdW(n):
        t, sl = n // 8, n % 8
        off = (t % 10) * 16384
        o = []
        for m in range(2):
            for rd in range(2):
                d = WR + (n % 4) * 8 + m * 4 + rd * 2
                o.append('ds_read_b64_tr_b16 v[%d:%d], v%d offset:%d' % (d, d + 1, vWr[off >> 16], (off & 65535) + m * 8192 + (16 * sl + 4 * rd) * 64))
        return o
    k.need('W0')
    k('s_barrier')
    if prof: k(stamp(1)); k('s_waitcnt lgkmcnt(0)')
    for n in range(3): emit(rdW(n))
    mf = []; pos = {}
    for n in range(96):
        c, ks = n // 32, n % 32
        pos[n] = len(mf)
        for m in range(2):
            mf.append(m32(vr(ACC + c * 32 + m * 16, 16), vr(WR + (n % 4) * 8 + m * 4, 4), ar(ks * 4, 4), '0' if ks == 0 else None))
        if ks == 31:
            for m in range(2):
                mf.append(m32(vr(ACC + c * 32 + m * 16, 16), vr(UT + (c * 2 + m) * 4, 4), vr(BS, 4)))
    S = Stream(mf, 6)
    for n in range(3, 96):
        r = rdW(n); g = pos[n - 3]
        for i in range(4): S.put_mem(g + i // 2, r[i], force=True)
    for g in range(len(mf)):
        if len(S.mem[g]) == 2: S.cost[g] += 1
    def put_after(g, seq):
        for ins in seq:
            S.alu[g].append(ins); S.cost[g] += 1
            t = ins[0] if isinstance(ins, tuple) else ins
            if t.startswith('buffer'): g += 1
        return g
    for t in range(12):
        b = pos[t * 8]
        if t + 1 < 12:
            S.put_pre(b + 8, NEED('W%d' % (t + 1)))
            S.put_pre(b + 8, 's_barrier')
        for x in {0: [4, 5], 1: [6, 7], 2: [8, 9], 3: [10, 11]}.get(t, []):
            put_after(b + (x % 2) * 6 + 1, dmaW(x))
    seq = ['v_add_f32 v%d, v%d, v%d' % (E, ST, ST + 2)] + ['v_add_f32 v%d, v%d, v%d' % (E, E, ST + 2 * i) for i in range(2, 8)]
    seq += ['v_mul_f32 v%d, 0x3b000000, v%d' % (E, E)]
    seq += ['v_add_f32 v%d, v%d, v%d' % (E + 1, ST + 1, ST + 3)] + ['v_add_f32 v%d, v%d, v%d' % (E + 1, E + 1, ST + 2 * i + 1) for i in range(2, 8)]
    seq += ['v_mov_b32 v%d, 0x3c800000' % (E + 3), 'v_mov_b32 v%d, 0' % (E + 4)]
    for i in range(8):
        seq += ['v_fma_f32 v%d, v%d, v%d, -v%d' % (E + 2, ST + 2 * i, E + 3, E), 'v_fmac_f32 v%d, v%d, v%d' % (E + 4, E + 2, E + 2)]
    seq += ['v_mul_f32 v%d, 0x42800000, v%d' % (E + 4, E + 4), 'v_add_f32 v%d, v%d, v%d' % (E + 1, E + 1, E + 4),
            'v_mul_f32 v%d, 0x3b000000, v%d' % (E + 1, E + 1)] + rbf(E + 1, E + 1)
    seq += ['v_add_f32 v%d, 0x3727c5ac, v%d' % (E + 1, E + 1)] + rbf(E + 1, E + 1) + ['v_sqrt_f32 v%d, v%d' % (E + 1, E + 1), 'v_sub_f32 v%d, 0, v%d' % (E, E)]
    seq += ['v_cvt_pk_bf16_f32 v%d, v%d, v%d' % (BS + 1, E + 1, E + 1), 'v_cvt_pk_bf16_f32 v%d, v%d, v%d' % (BS, E, E),
            'v_and_b32 v%d, 0xffff0000, v%d' % (vDen, BS + 1), 'v_rcp_f32 v%d, v%d' % (vRstd, vDen),
            'v_cmp_gt_u32 vcc, 32, v%d' % vL, 'v_mov_b32 v%d, 0' % (BS + 2), 'v_mov_b32 v%d, 0' % (BS + 3),
            'v_cndmask_b32 v%d, 0, v%d, vcc' % (BS, BS), 'v_cndmask_b32 v%d, 0, v%d, vcc' % (BS + 1, BS + 1)]
    g = S.put_seq(pos[14], seq)
    assert g < pos[31], (g, pos[31])
    def epi(c):
        G = ACC + c * 32; U = G + 16
        o = []
        for s in range(2):
            for hh in range(2):
                es = [s * 8 + hh * 4 + i for i in range(4)]
                t = [E + 8 + i for i in range(4)]
                o += ['v_mul_f32 v%d, v%d, v%d' % (G + e, G + e, vRstd) for e in es]
                o += ['v_mul_f32 v%d, v%d, v%d' % (t[i], G + e, G + e) for i, e in enumerate(es)]
                o += ['v_fma_f32 v%d, v%d, s%d, v178' % (t[i], t[i], sC1) for i in range(4)]
                o += ['v_mul_f32 v%d, v%d, v%d' % (t[i], t[i], G + e) for i, e in enumerate(es)]
                o += ['v_exp_f32 v%d, v%d' % (t[i], t[i]) for i in range(4)]
                o += ['v_mul_f32 v%d, v%d, v%d' % (U + e, U + e, G + e) for e in es]
                o += ['v_fma_f32 v%d, v%d, v%d, v%d' % (t[i], t[i], vDen, vDen) for i in range(4)]
                o += ['v_rcp_f32 v%d, v%d' % (t[i], t[i]) for i in range(4)]
                o += ['v_mul_f32 v%d, v%d, v%d' % (U + e, U + e, t[i]) for i, e in enumerate(es)]
                p = E + 16 + s * 4 + hh * 2
                o += ['v_cvt_pk_bf16_f32 v%d, v%d, v%d' % (p, U + es[0], U + es[1]), 'v_cvt_pk_bf16_f32 v%d, v%d, v%d' % (p + 1, U + es[2], U + es[3])]
            p = E + 16 + s * 4
            o.append('buffer_store_dwordx4 v[%d:%d], v%d, s[%d:%d], s%d offen offset:%d' % (p, p + 3, vAst, WS, WS + 3, sAct, c * 1024 + s * 512))
        return o
    for c in range(2):
        g = max(g, pos[(c + 1) * 32] + 2)
        for ins in epi(c):
            g = S.put_alu(g, ins)
        print('k4 epi', c, 'ends at', g, 'of', len(mf))
    S.emit(k)
    if prof: k(stamp(2)); k('s_waitcnt lgkmcnt(0)')
    emit(epi(2))
    if prof: prof_end(k, li, 4, WS, sW, 0)
    k.label('K4_END')
    k('s_endpgm')
    k.finalize()
    return k

if __name__ == '__main__':
    k = gen_k4(True); print(k.maxregs(), len(k.code), k.nops_inserted)
```

```python
import sys
from common import *
from k1 import gen_k1
from k2 import gen_k2
from k35 import gen_k35
from k4 import gen_k4
NAME = 'adaLN_cond__compressed_kv_cla__geglu_ffn__prompt'
def build(prof):
    ks = [gen_k1(prof), gen_k2(prof), gen_k35(3, prof, 2), gen_k4(prof, 3), gen_k35(5, prof, 4)]
    L = [(ks[0].name, 256, 256, 163840), (ks[1].name, 256, 256, 163840), (ks[2].name, 256, 256, 131072),
         (ks[3].name, 240, 256, 163840), (ks[4].name, 256, 256, 131072)]
    ref = open('cdna_kernels/%s.s.ref' % NAME).read().split('\n')
    hdr = '\n'.join(l for l in ref if l.startswith(';') and '@launch' not in l and 'Override launch' not in l and 'grid=ceil' not in l)
    hdr += '\n; Generated by dev/gen.py (own generator): 5 launches - KV projection(+mod,LN1) / Q-proj+causal attention / out-proj / GEGLU gate-up / down'
    return build_file(hdr, L, ks)
if __name__ == '__main__':
    open('t_all.s', 'w').write(build(True))
    open('cdna_kernels/%s.s' % NAME, 'w').write(build(False))
```
